```python
import torch

def _softmax(x, axis=-1):
    return torch.softmax(x, dim=axis)
def _gelu(x):
    return torch.nn.functional.gelu(x, approximate="tanh")
def _silu(x):
    return torch.nn.functional.silu(x)
def _sigmoid(x):
    return torch.sigmoid(x)
def _layernorm(x, axis=-1, eps=1e-5):
    m = x.mean(dim=axis, keepdim=True)
    v = x.var(dim=axis, keepdim=True, unbiased=False)
    return (x - m) / torch.sqrt(v + eps)
def _scatter_add(tgt, idx, src, axis=0):
    return tgt.clone().index_add_(axis, idx, src)
def _segment_sum(src, seg, n):
    out = torch.zeros((n,) + src.shape[1:], dtype=src.dtype)
    return out.index_add_(0, seg, src)
def _pad(x, pw):
    flat = tuple(v for pair in reversed(pw) for v in pair)
    return torch.nn.functional.pad(x, flat)

kernel_name = 'interleave_layers__spectral_gfnet__dense_activation_gelu__prompt'

def setup_inputs():

    _w = (lambda a: (lambda t: t.to(torch.bfloat16) if t.is_floating_point() else t)(torch.as_tensor(a)))
    def _A_setup():
        B, S, D = 1, 2048, 640
        Df = D // 2 + 1
        return {
            "x": _w((lambda *s: torch.randn(*s, dtype=torch.bfloat16) * 0.05)(B, S, D)),
            "w_r": _w((lambda *s: torch.randn(*s, dtype=torch.bfloat16) * 0.4)(S, Df) * 0.02),
            "w_i": _w((lambda *s: torch.randn(*s, dtype=torch.bfloat16) * 0.4)(S, Df) * 0.02),
        }
    _A_in = _A_setup()

    def _B_setup():
        B, S, D, F = 1, 2048, 640, 1728
        return {
            "x": _w((lambda *s: torch.randn(*s, dtype=torch.bfloat16) * 0.05)(B, S, D)),
            "w1": _w((lambda *s: torch.randn(*s, dtype=torch.bfloat16) * 0.4)(D, F) * (D ** -0.5)),
            "b1": _w((lambda *s: torch.randn(*s, dtype=torch.bfloat16) * 12.8)(F) * 0.01),
            "w2": _w((lambda *s: torch.randn(*s, dtype=torch.bfloat16) * 0.1)(F, D) * (F ** -0.5)),
            "b2": _w((lambda *s: torch.randn(*s, dtype=torch.bfloat16) * 0.8)(D) * 0.01),
        }
    _B_in = _B_setup()

    return {
        "A_x": _A_in["x"],
        "A_w_r": _A_in["w_r"],
        "A_w_i": _A_in["w_i"],
        "B_x": _B_in["x"],
        "B_w1": _B_in["w1"],
        "B_b1": _B_in["b1"],
        "B_w2": _B_in["w2"],
        "B_b2": _B_in["b2"],
    }

def reference(A_x, A_w_r, A_w_i, B_x, B_w1, B_b1, B_w2, B_b2):
    def _A_ref(x, w_r, w_i):
        B, S, D = x.shape
        X = (lambda x, axes=(-2,-1): torch.fft.rfft2(x.float(), dim=axes))(x, axes=(-2, -1))
        W = w_r + 1j * w_i
        X = X * W
        y = (lambda x, s, axes=(-2,-1): torch.fft.irfft2(x, s=s, dim=axes).to(torch.bfloat16))(X, (S, D), axes=(-2, -1))
        return y

    def _B_ref(x, w1, b1, w2, b2):
        h = torch.einsum("bsd,df->bsf", x, w1) + b1
        h = _gelu(h)
        return torch.einsum("bsf,fd->bsd", h, w2) + b2

    x = A_x
    x = x + _A_ref(_layernorm(x, axis=-1), A_w_r, A_w_i)
    x = x + _B_ref(_layernorm(x, axis=-1), B_w1, B_b1, B_w2, B_b2)
    x = x + _A_ref(_layernorm(x, axis=-1), A_w_r, A_w_i)
    x = x + _B_ref(_layernorm(x, axis=-1), B_w1, B_b1, B_w2, B_b2)
    return x
```

```python
import math, sys
NAME="interleave_layers__spectral_gfnet__dense_activation_gelu__prompt"
OFF=dict(XT=0,WT=0x600000,W1T=0x900000,W2T=0xC00000,X1=0xF00000,XN=0x1200000,H=0x1500000,X2=0x1C00000,X3=0x1F00000)
SZX=2048*640*2
def f2u(x):
    import struct; return "0x%08x"%struct.unpack("<I",struct.pack("<f",x))[0]
class K:
    def __init__(s,name,nv=256):
        s.name=name; s.L=[]; s.free=list(range(nv-1,0,-1)); s.hi=0
    def e(s,t): s.L.append("    "+t)
    def a(s,n=1,al=1):
        if n==1:
            r=min(s.free); s.free.remove(r); s.hi=max(s.hi,r); return r
        fs=set(s.free)
        for b in range(1,256):
            if b%al==0 and all((b+i) in fs for i in range(n)):
                for i in range(n): s.free.remove(b+i)
                s.hi=max(s.hi,b+n-1); return b
        raise Exception("regs")
    def f(s,*rs):
        for r in rs:
            if isinstance(r,tuple): s.f(*r)
            else:
                assert r not in s.free; s.free.append(r)
    def fr(s,b,n): s.f(*range(b,b+n))
    def prologue(s,nwg):
        s.e("s_cmp_ge_u32 s2, %d"%nwg); s.e("s_cbranch_scc1 L_end_%s"%s.name)
        s.e("s_load_dwordx16 s[4:19], s[0:1], 0"); s.e("s_load_dwordx4 s[20:23], s[0:1], 64"); s.e("s_load_dwordx2 s[24:25], s[0:1], 80")
        s.e("s_waitcnt lgkmcnt(0)")
    def srd(s,d,base,off,size):
        s.e("s_add_u32 s%d, s%d, 0x%x"%(d,base,off)); s.e("s_addc_u32 s%d, s%d, 0"%(d+1,base+1))
        s.e("s_mov_b32 s%d, 0x%x"%(d+2,size)); s.e("s_mov_b32 s%d, 0x00020000"%(d+3))
    def cadd(s,a,b):
        r=(s.a(),s.a()); s.e("v_add_f32 v%d, v%d, v%d"%(r[0],a[0],b[0])); s.e("v_add_f32 v%d, v%d, v%d"%(r[1],a[1],b[1])); return r
    def csub(s,a,b):
        r=(s.a(),s.a()); s.e("v_sub_f32 v%d, v%d, v%d"%(r[0],a[0],b[0])); s.e("v_sub_f32 v%d, v%d, v%d"%(r[1],a[1],b[1])); return r
    def addmi(s,a,b,sg):
        r=(s.a(),s.a())
        if sg>0: s.e("v_add_f32 v%d, v%d, v%d"%(r[0],a[0],b[1])); s.e("v_sub_f32 v%d, v%d, v%d"%(r[1],a[1],b[0]))
        else: s.e("v_sub_f32 v%d, v%d, v%d"%(r[0],a[0],b[1])); s.e("v_add_f32 v%d, v%d, v%d"%(r[1],a[1],b[0]))
        return r
    def bf4(s,a,inv):
        t0=s.cadd(a[0],a[2]); t1=s.csub(a[0],a[2]); t2=s.cadd(a[1],a[3]); t3=s.csub(a[1],a[3]); s.f(*a)
        y0=s.cadd(t0,t2); y2=s.csub(t0,t2); sg=-1 if inv else 1
        y1=s.addmi(t1,t3,sg); y3=s.addmi(t1,t3,-sg); s.f(t0,t1,t2,t3); return [y0,y1,y2,y3]
    def bf8(s,a,inv):
        E=s.bf4([a[0],a[2],a[4],a[6]],inv); O=s.bf4([a[1],a[3],a[5],a[7]],inv)
        h=f2u(math.sqrt(0.5)); sg=-1 if inv else 1
        for idx,neg in ((1,False),(3,True)):
            o=O[idx]; n=(s.a(),s.a())
            if sg>0: s.e("v_add_f32 v%d, v%d, v%d"%(n[0],o[0],o[1])); s.e("v_sub_f32 v%d, v%d, v%d"%(n[1],o[1],o[0]))
            else: s.e("v_sub_f32 v%d, v%d, v%d"%(n[0],o[0],o[1])); s.e("v_add_f32 v%d, v%d, v%d"%(n[1],o[1],o[0]))
            s.e("v_mul_f32 v%d, %s, v%d"%(n[0],h,n[0])); s.e("v_mul_f32 v%d, %s, v%d"%(n[1],h,n[1])); s.f(o)
            O[idx]=n
        y=[None]*8
        y[0]=s.cadd(E[0],O[0]); y[4]=s.csub(E[0],O[0])
        y[1]=s.cadd(E[1],O[1]); y[5]=s.csub(E[1],O[1])
        y[2]=s.addmi(E[2],O[2],sg); y[6]=s.addmi(E[2],O[2],-sg)
        y[3]=s.addmi(E[3],O[3],sg); y[7]=s.addmi(E[3],O[3],-sg)
        s.f(*E); s.f(*O); return y
    def bf5(s,a,inv):
        c1,c2=f2u(math.cos(2*math.pi/5)),f2u(math.cos(4*math.pi/5)); s1,s2=f2u(math.sin(2*math.pi/5)),f2u(math.sin(4*math.pi/5)); ns1=f2u(-math.sin(2*math.pi/5))
        t1=s.cadd(a[1],a[4]); t2=s.cadd(a[2],a[3]); t3=s.csub(a[1],a[4]); t4=s.csub(a[2],a[3])
        y0=s.cadd(a[0],t1); y0b=s.cadd(y0,t2); s.f(y0); y0=y0b
        m1=(s.a(),s.a()); m2=(s.a(),s.a()); n1=(s.a(),s.a()); n2=(s.a(),s.a())
        for c in (0,1):
            s.e("v_mov_b32 v%d, v%d"%(m1[c],a[0][c])); s.e("v_fmac_f32 v%d, %s, v%d"%(m1[c],c1,t1[c])); s.e("v_fmac_f32 v%d, %s, v%d"%(m1[c],c2,t2[c]))
            s.e("v_mov_b32 v%d, v%d"%(m2[c],a[0][c])); s.e("v_fmac_f32 v%d, %s, v%d"%(m2[c],c2,t1[c])); s.e("v_fmac_f32 v%d, %s, v%d"%(m2[c],c1,t2[c]))
            s.e("v_mul_f32 v%d, %s, v%d"%(n1[c],s1,t3[c])); s.e("v_fmac_f32 v%d, %s, v%d"%(n1[c],s2,t4[c]))
            s.e("v_mul_f32 v%d, %s, v%d"%(n2[c],s2,t3[c])); s.e("v_fmac_f32 v%d, %s, v%d"%(n2[c],ns1,t4[c]))
        s.f(*a); s.f(t1,t2,t3,t4); sg=-1 if inv else 1
        y1=s.addmi(m1,n1,sg); y4=s.addmi(m1,n1,-sg); y2=s.addmi(m2,n2,sg); y3=s.addmi(m2,n2,-sg); s.f(m1,m2,n1,n2)
        return [y0,y1,y2,y3,y4]
    def bf(s,a,inv): return {4:s.bf4,8:s.bf8,5:s.bf5}[len(a)](a,inv)
    def cmul(s,v,c,sn,neg):
        r=(s.a(),s.a()); p,m=("","-") if not neg else ("-","")
        s.e("v_mul_f32 v%d, v%d, v%d"%(r[0],v[0],c)); s.e("v_fma_f32 v%d, %sv%d, v%d, v%d"%(r[0],m,v[1],sn,r[0]))
        s.e("v_mul_f32 v%d, v%d, v%d"%(r[1],v[1],c)); s.e("v_fma_f32 v%d, %sv%d, v%d, v%d"%(r[1],p,v[0],sn,r[1]))
        s.f(v); return r
    def twiddle(s,v,kf,inv):
        for r in range(1,len(v)):
            t=s.a(); c=s.a(); sn=s.a()
            s.e("v_mul_f32 v%d, %s, v%d"%(t,f2u(float(r)),kf)); s.e("v_cos_f32 v%d, v%d"%(c,t)); s.e("v_sin_f32 v%d, v%d"%(sn,t)); s.e("s_nop 0")
            v[r]=s.cmul(v[r],c,sn,not inv); s.f(t,c,sn)
    def bfround(s,r):
        s.e("v_cvt_pk_bf16_f32 v%d, v%d, v%d"%(r,r,r)); s.e("v_lshlrev_b32 v%d, 16, v%d"%(r,r))
    def wsum(s,v,sd):
        t=s.a()
        for o in (0x041F,0x081F,0x101F,0x201F,0x401F):
            s.e("ds_swizzle_b32 v%d, v%d offset:0x%x"%(t,v,o)); s.e("s_waitcnt lgkmcnt(0)"); s.e("v_add_f32 v%d, v%d, v%d"%(v,v,t))
        s.e("s_nop 1"); s.e("v_readlane_b32 s%d, v%d, 32"%(sd,v)); s.e("s_nop 3"); s.e("v_add_f32 v%d, s%d, v%d"%(v,sd,v)); s.e("s_nop 1"); s.e("v_readlane_b32 s%d, v%d, 0"%(sd,v)); s.e("s_nop 3")
        s.f(t)
    def layernorm(s,x):
        t=s.a(); u=s.a(); mean=s.a()
        s.e("v_add_f32 v%d, v%d, v%d"%(t,x[0],x[1]))
        for r in x[2:]: s.e("v_add_f32 v%d, v%d, v%d"%(t,t,r))
        s.wsum(t,60); s.e("v_mov_b32 v%d, s60"%mean); s.e("v_mul_f32 v%d, %s, v%d"%(mean,f2u(1/640),mean))
        s.e("v_mov_b32 v%d, 0"%t)
        for r in x: s.e("v_sub_f32 v%d, v%d, v%d"%(u,r,mean)); s.e("v_fmac_f32 v%d, v%d, v%d"%(t,u,u))
        s.wsum(t,60); s.e("v_mov_b32 v%d, s60"%t); s.e("v_mul_f32 v%d, %s, v%d"%(t,f2u(1/640),t))
        s.bfround(mean); s.bfround(t); s.e("v_add_f32 v%d, %s, v%d"%(t,f2u(1e-5),t)); s.bfround(t)
        s.e("v_sqrt_f32 v%d, v%d"%(t,t)); s.e("s_nop 0"); s.bfround(t); s.e("v_rcp_f32 v%d, v%d"%(t,t)); s.e("s_nop 0")
        for r in x:
            s.e("v_sub_f32 v%d, v%d, v%d"%(r,r,mean)); s.bfround(r); s.e("v_mul_f32 v%d, v%d, v%d"%(r,r,t)); s.bfround(r)
        s.f(t,u,mean)
    def end(s,lds=0):
        s.L.append("L_end_%s:"%s.name); s.e("s_endpgm")
        nv=(s.hi+8)//8*8
        return ".globl %s\n.p2align 8\n.type %s,@function\n%s:\n"%(s.name,s.name,s.name)+"\n".join(s.L)+"\n", \
          ".p2align 6\n.amdhsa_kernel %s\n  .amdhsa_next_free_vgpr %d\n  .amdhsa_next_free_sgpr 102\n  .amdhsa_accum_offset %d\n  .amdhsa_group_segment_fixed_size 0\n  .amdhsa_kernarg_size 88\n  .amdhsa_user_sgpr_count 2\n  .amdhsa_user_sgpr_kernarg_segment_ptr 1\n  .amdhsa_system_sgpr_workgroup_id_x 1\n.end_amdhsa_kernel\n"%(s.name,nv,nv)
RS=2576
def lds_rw(k,op,v,addr,offs):
    for c,o in zip(v,offs):
        if op=='w':
            t=k.a(2,2); k.e("v_mov_b32 v%d, v%d"%(t,c[0])); k.e("v_mov_b32 v%d, v%d"%(t+1,c[1])); k.e("ds_write_b64 v%d, v[%d:%d] offset:%d"%(addr,t,t+1,o)); k.fr(t,2)
def lds_read(k,addr,offs):
    out=[]
    for o in offs:
        t=k.a(2,2); k.e("ds_read_b64 v[%d:%d], v%d offset:%d"%(t,t+1,addr,o)); out.append((t,t+1))
    k.e("s_waitcnt lgkmcnt(0)"); return out
def lanewave(k):
    lane=k.a(); k.e("v_and_b32 v%d, 63, v0"%lane); w=k.a(); k.e("v_lshrrev_b32 v%d, 6, v0"%w); k.e("s_nop 1"); k.e("v_readfirstlane_b32 s26, v%d"%w); k.e("s_nop 3"); k.f(w); return lane
def tofloat(k,r,scale):
    k.e("v_cvt_f32_u32 v%d, v%d"%(r,r)); k.e("v_mul_f32 v%d, %s, v%d"%(r,f2u(scale),r))

def k_rowfft(name,src):
    k=K(name); k.prologue(256)
    if src[0]=='in': k.srd(28,src[1],0,SZX)
    else: k.srd(28,24,src[1],SZX)
    k.srd(32,24,OFF['XT'],321*2048*8)
    lane=lanewave(k)
    k.e("s_lshl_b32 s27, s2, 3"); k.e("s_add_u32 s27, s27, s26"); k.e("s_mul_i32 s27, s27, 1280")
    off=k.a(); k.e("v_lshlrev_b32 v%d, 2, v%d"%(off,lane))
    d=[k.a() for _ in range(5)]
    for r in range(5): k.e("buffer_load_dword v%d, v%d, s[28:31], s27 offen offset:%d"%(d[r],off,256*r))
    k.e("s_waitcnt vmcnt(0)")
    z=[]
    for r in range(5):
        lo=k.a(); k.e("v_lshlrev_b32 v%d, 16, v%d"%(lo,d[r])); k.e("v_and_b32 v%d, 0xffff0000, v%d"%(d[r],d[r])); z.append((lo,d[r]))
    k.layernorm([q for c in z for q in c])
    y=k.bf(z,False)
    base=k.a(); k.e("s_mul_i32 s27, s26, %d"%RS)
    k.e("v_mul_u32_u24 v%d, 40, v%d"%(base,lane)); k.e("v_add_u32 v%d, s27, v%d"%(base,base))
    lds_rw(k,'w',y,base,[8*r for r in range(5)]); k.f(*y)
    k.e("s_waitcnt lgkmcnt(0)"); k.e("s_mov_b64 s[40:41], exec"); k.e("s_mov_b32 s42, -1"); k.e("s_mov_b32 s43, 0xff"); k.e("s_mov_b64 exec, s[42:43]")
    rd=k.a(); k.e("v_lshlrev_b32 v%d, 3, v%d"%(rd,lane)); k.e("v_add_u32 v%d, s27, v%d"%(rd,rd))
    v=lds_read(k,rd,[320*r for r in range(8)])
    q=k.a(); kk=k.a(); k.e("v_mul_u32_u24 v%d, 205, v%d"%(q,lane)); k.e("v_lshrrev_b32 v%d, 10, v%d"%(q,q)); k.e("v_mul_u32_u24 v%d, 5, v%d"%(kk,q)); k.e("v_sub_u32 v%d, v%d, v%d"%(kk,lane,kk))
    k.e("v_mul_u32_u24 v%d, 40, v%d"%(q,q)); k.e("v_add_u32 v%d, v%d, v%d"%(q,q,kk)); k.e("v_lshlrev_b32 v%d, 3, v%d"%(q,q)); k.e("v_add_u32 v%d, s27, v%d"%(q,q))
    tofloat(k,kk,1/40); k.twiddle(v,kk,False); y=k.bf(v,False); lds_rw(k,'w',y,q,[40*r for r in range(8)]); k.f(*y)
    k.e("s_waitcnt lgkmcnt(0)")
    v=lds_read(k,rd,[320*r for r in range(8)])
    k.e("v_mov_b32 v%d, v%d"%(kk,lane)); tofloat(k,kk,1/320); k.twiddle(v,kk,False); y=k.bf(v,False); lds_rw(k,'w',y,rd,[320*r for r in range(8)]); k.f(*y)
    k.e("s_mov_b64 exec, s[40:41]"); k.e("s_waitcnt lgkmcnt(0)"); k.e("s_barrier")
    row=k.a(); k0=k.a(); k.e("v_and_b32 v%d, 7, v0"%row); k.e("v_lshrrev_b32 v%d, 3, v0"%k0)
    rb=k.a(); k.e("v_mul_u32_u24 v%d, %d, v%d"%(rb,RS,row))
    k.e("s_lshl_b32 s27, s2, 3"); k.e("v_add_u32 v%d, s27, v%d"%(row,row))
    for i in range(6):
        kv=k.a(); k.e("v_add_u32 v%d, %d, v%d"%(kv,64*i,k0))
        if i==5: k.e("v_cmp_eq_u32 vcc, 320, v%d"%kv); k.e("s_and_saveexec_b64 s[40:41], vcc")
        a1=k.a(); a2=k.a()
        k.e("v_cmp_eq_u32 vcc, 320, v%d"%kv); k.e("v_cndmask_b32 v%d, v%d, 0, vcc"%(a1,kv))
        k.e("v_sub_u32 v%d, 320, v%d"%(a2,kv)); k.e("v_cmp_eq_u32 vcc, 0, v%d"%kv); k.e("v_cndmask_b32 v%d, v%d, 0, vcc"%(a2,a2))
        for a_ in (a1,a2): k.e("v_lshlrev_b32 v%d, 3, v%d"%(a_,a_)); k.e("v_add_u32 v%d, v%d, v%d"%(a_,a_,rb))
        A=lds_read(k,a1,[0])[0]; B=lds_read(k,a2,[0])[0]
        xe=(k.a(),k.a()); xo=(k.a(),k.a())
        k.e("v_add_f32 v%d, v%d, v%d"%(xe[0],A[0],B[0])); k.e("v_sub_f32 v%d, v%d, v%d"%(xe[1],A[1],B[1])); k.e("v_sub_f32 v%d, v%d, v%d"%(xo[0],A[0],B[0])); k.e("v_add_f32 v%d, v%d, v%d"%(xo[1],A[1],B[1]))
        c=k.a(); sn=k.a(); k.e("v_mov_b32 v%d, v%d"%(a1,kv)); tofloat(k,a1,1/640); k.e("v_cos_f32 v%d, v%d"%(c,a1)); k.e("v_sin_f32 v%d, v%d"%(sn,a1)); k.e("s_nop 0")
        o=k.a(2,2)
        k.e("v_fma_f32 v%d, -v%d, v%d, v%d"%(o,sn,xo[0],xe[0])); k.e("v_fma_f32 v%d, v%d, v%d, v%d"%(o,c,xo[1],o))
        k.e("v_fma_f32 v%d, -v%d, v%d, v%d"%(o+1,sn,xo[1],xe[1])); k.e("v_fma_f32 v%d, -v%d, v%d, v%d"%(o+1,c,xo[0],o+1))
        k.e("v_mul_f32 v%d, 0.5, v%d"%(o,o)); k.e("v_mul_f32 v%d, 0.5, v%d"%(o+1,o+1))
        k.e("v_lshlrev_b32 v%d, 11, v%d"%(kv,kv)); k.e("v_add_u32 v%d, v%d, v%d"%(kv,kv,row)); k.e("v_lshlrev_b32 v%d, 3, v%d"%(kv,kv))
        k.e("buffer_store_dwordx2 v[%d:%d], v%d, s[32:35], 0 offen"%(o,o+1,kv)); k.e("s_nop 1")
        k.fr(o,2); k.f(kv,a1,a2,A,B,xe,xo,c,sn)
    return k.end()

def k_col(name):
    k=K(name); k.prologue(321)
    k.e("s_mul_i32 s27, s2, %d"%(2048*8)); k.e("s_lshl_b32 s26, s2, 13")
    k.srd(28,24,OFF['XT'],321*2048*8); k.srd(32,24,OFF['WT'],321*2048*4)
    off=k.a(); k.e("v_lshlrev_b32 v%d, 3, v0"%off)
    v=[]
    for r in range(8):
        t=k.a(2,2); k.e("s_add_u32 s40, s27, %d"%(2048*r)); k.e("buffer_load_dwordx2 v[%d:%d], v%d, s[28:31], s40 offen"%(t,t+1,off)); v.append((t,t+1))
    woff=k.a(); k.e("v_lshlrev_b32 v%d, 2, v0"%woff); wv=[k.a() for _ in range(8)]
    for r in range(8): k.e("s_add_u32 s40, s26, %d"%(1024*r)); k.e("buffer_load_dword v%d, v%d, s[32:35], s40 offen"%(wv[r],woff))
    k.e("s_waitcnt vmcnt(8)")
    buf=[0]
    def fft(v,inv):
        y=k.bf(v,inv)
        for p,(Ns,R) in enumerate(((8,8),(64,8),(512,4))):
            pR=len(y) if p==0 else 8
            pNs=Ns//8
            wa=k.a(); t=k.a()
            k.e("v_and_b32 v%d, %d, v0"%(t,pNs-1)); k.e("v_lshrrev_b32 v%d, %d, v0"%(wa,int(math.log2(pNs)))); k.e("v_lshlrev_b32 v%d, %d, v%d"%(wa,int(math.log2(pNs*8)),wa)); k.e("v_add_u32 v%d, v%d, v%d"%(wa,wa,t)); k.e("v_lshlrev_b32 v%d, 3, v%d"%(wa,wa))
            B=buf[0]*16384; buf[0]^=1
            lds_rw(k,'w',y,wa,[B+8*pNs*r for r in range(8)]); k.f(*y); k.f(wa,t)
            k.e("s_waitcnt lgkmcnt(0)"); k.e("s_barrier")
            if R==8:
                v=lds_read(k,off,[B+2048*r for r in range(8)])
                kk=k.a(); k.e("v_and_b32 v%d, %d, v0"%(kk,Ns-1)); tofloat(k,kk,1/(Ns*R)); k.twiddle(v,kk,inv); k.f(kk); y=k.bf(v,inv)
            else:
                y=[None]*8
                for h in range(2):
                    v=lds_read(k,off,[B+2048*h+4096*r for r in range(4)])
                    kk=k.a(); k.e("v_add_u32 v%d, %d, v0"%(kk,256*h)); tofloat(k,kk,1/2048); k.twiddle(v,kk,inv); k.f(kk); yy=k.bf(v,inv)
                    for r in range(4): y[h+2*r]=yy[r]
        return y
    y=fft(v,False)
    k.e("s_waitcnt vmcnt(0)")
    sc=f2u(1/(2048*640))
    for r in range(8):
        c=k.a(); sn=k.a(); k.e("v_lshlrev_b32 v%d, 16, v%d"%(c,wv[r])); k.e("v_and_b32 v%d, 0xffff0000, v%d"%(sn,wv[r])); k.e("v_mul_f32 v%d, %s, v%d"%(c,sc,c)); k.e("v_mul_f32 v%d, %s, v%d"%(sn,sc,sn))
        y[r]=k.cmul(y[r],c,sn,False); k.f(c,sn)
    y=fft(y,True)
    for r in range(8):
        t=k.a(2,2); k.e("v_mov_b32 v%d, v%d"%(t,y[r][0])); k.e("v_mov_b32 v%d, v%d"%(t+1,y[r][1])); k.e("s_add_u32 s40, s27, %d"%(2048*r)); k.e("buffer_store_dwordx2 v[%d:%d], v%d, s[28:31], s40 offen"%(t,t+1,off))
    return k.end()

def k_rowinv(name,src,dst):
    k=K(name); k.prologue(256)
    if src[0]=='in': k.srd(28,src[1],0,SZX)
    else: k.srd(28,24,src[1],SZX)
    k.srd(32,24,OFF['XT'],321*2048*8); k.srd(36,24,dst,SZX); k.srd(44,24,OFF['XN'],SZX)
    lane=lanewave(k)
    row=k.a(); k0=k.a(); k.e("v_and_b32 v%d, 7, v0"%row); k.e("v_lshrrev_b32 v%d, 3, v0"%k0)
    rb=k.a(); k.e("v_mul_u32_u24 v%d, %d, v%d"%(rb,RS,row))
    k.e("s_lshl_b32 s27, s2, 3"); k.e("v_add_u32 v%d, s27, v%d"%(row,row))
    for i in range(6):
        kv=k.a(); ad=k.a(); t=k.a(2,2); k.e("v_add_u32 v%d, %d, v%d"%(kv,64*i,k0))
        if i==5: k.e("v_cmp_eq_u32 vcc, 320, v%d"%kv); k.e("s_and_saveexec_b64 s[40:41], vcc")
        k.e("v_lshlrev_b32 v%d, 11, v%d"%(ad,kv)); k.e("v_add_u32 v%d, v%d, v%d"%(ad,ad,row)); k.e("v_lshlrev_b32 v%d, 3, v%d"%(ad,ad))
        k.e("buffer_load_dwordx2 v[%d:%d], v%d, s[32:35], 0 offen"%(t,t+1,ad)); k.e("s_waitcnt vmcnt(0)")
        if i in (0,5):
            k.e("v_cmp_eq_u32 vcc, %d, v%d"%(64*i,kv)); k.e("v_cndmask_b32 v%d, v%d, 0, vcc"%(t+1,t+1))
        k.e("v_lshlrev_b32 v%d, 3, v%d"%(ad,kv)); k.e("v_add_u32 v%d, v%d, v%d"%(ad,ad,rb)); k.e("ds_write_b64 v%d, v[%d:%d]"%(ad,t,t+1))
        k.e("s_waitcnt lgkmcnt(0)")
        k.fr(t,2); k.f(kv,ad)
    k.e("s_mov_b64 exec, s[40:41]"); k.e("s_barrier")
    k.e("s_mul_i32 s27, s26, %d"%RS)
    rd=k.a(); k.e("v_lshlrev_b32 v%d, 3, v%d"%(rd,lane)); k.e("v_add_u32 v%d, s27, v%d"%(rd,rd))
    k.e("s_mov_b32 s42, -1"); k.e("s_mov_b32 s43, 0xff"); k.e("s_mov_b64 exec, s[42:43]")
    rv=k.a(); k.e("v_lshlrev_b32 v%d, 3, v%d"%(rv,lane)); k.e("v_sub_u32 v%d, %d, v%d"%(rv,320*8-7*320,rv)); k.e("v_add_u32 v%d, s27, v%d"%(rv,rv))
    A=lds_read(k,rd,[320*r for r in range(8)]); B=lds_read(k,rv,[320*(7-r) for r in range(8)])
    v=[]
    for r in range(8):
        xe=(k.a(),k.a()); xo=(k.a(),k.a()); a_,b_=A[r],B[r]
        k.e("v_add_f32 v%d, v%d, v%d"%(xe[0],a_[0],b_[0])); k.e("v_sub_f32 v%d, v%d, v%d"%(xe[1],a_[1],b_[1])); k.e("v_sub_f32 v%d, v%d, v%d"%(xo[0],a_[0],b_[0])); k.e("v_add_f32 v%d, v%d, v%d"%(xo[1],a_[1],b_[1]))
        t=k.a(); c=k.a(); sn=k.a(); k.e("v_add_u32 v%d, %d, v%d"%(t,40*r,lane)); tofloat(k,t,1/640); k.e("v_cos_f32 v%d, v%d"%(c,t)); k.e("v_sin_f32 v%d, v%d"%(sn,t)); k.e("s_nop 0")
        k.e("v_fma_f32 v%d, -v%d, v%d, v%d"%(xe[0],sn,xo[0],xe[0])); k.e("v_fma_f32 v%d, -v%d, v%d, v%d"%(xe[0],c,xo[1],xe[0]))
        k.e("v_fma_f32 v%d, -v%d, v%d, v%d"%(xe[1],sn,xo[1],xe[1])); k.e("v_fma_f32 v%d, v%d, v%d, v%d"%(xe[1],c,xo[0],xe[1]))
        k.f(t,c,sn,xo,a_,b_); v.append(xe)
    y=k.bf(v,True)
    wa=k.a(); k.e("v_lshlrev_b32 v%d, 6, v%d"%(wa,lane)); k.e("v_add_u32 v%d, s27, v%d"%(wa,wa))
    lds_rw(k,'w',y,wa,[8*r for r in range(8)]); k.f(*y); k.e("s_waitcnt lgkmcnt(0)")
    v=lds_read(k,rd,[320*r for r in range(8)])
    kk=k.a(); k.e("v_and_b32 v%d, 7, v%d"%(kk,lane)); k.e("v_lshrrev_b32 v%d, 3, v%d"%(wa,lane)); k.e("v_lshlrev_b32 v%d, 6, v%d"%(wa,wa)); k.e("v_add_u32 v%d, v%d, v%d"%(wa,wa,kk)); k.e("v_lshlrev_b32 v%d, 3, v%d"%(wa,wa)); k.e("v_add_u32 v%d, s27, v%d"%(wa,wa))
    tofloat(k,kk,1/64); k.twiddle(v,kk,True); y=k.bf(v,True); lds_rw(k,'w',y,wa,[64*r for r in range(8)]); k.f(*y)
    k.e("s_mov_b64 exec, s[40:41]"); k.e("s_waitcnt lgkmcnt(0)")
    v=lds_read(k,rd,[512*r for r in range(5)])
    k.e("v_mov_b32 v%d, v%d"%(kk,lane)); tofloat(k,kk,1/320); k.twiddle(v,kk,True); y=k.bf(v,True)
    k.e("s_lshl_b32 s27, s2, 3"); k.e("s_add_u32 s27, s27, s26"); k.e("s_mul_i32 s27, s27, 1280")
    off=k.a(); k.e("v_lshlrev_b32 v%d, 2, v%d"%(off,lane))
    d=[k.a() for _ in range(5)]
    for r in range(5): k.e("buffer_load_dword v%d, v%d, s[28:31], s27 offen offset:%d"%(d[r],off,256*r))
    k.e("s_waitcnt vmcnt(0)")
    xs=[]
    for r in range(5):
        k.bfround(y[r][0]); k.bfround(y[r][1]); t=k.a()
        k.e("v_lshlrev_b32 v%d, 16, v%d"%(t,d[r])); k.e("v_add_f32 v%d, v%d, v%d"%(y[r][0],y[r][0],t)); k.e("v_and_b32 v%d, 0xffff0000, v%d"%(t,d[r])); k.e("v_add_f32 v%d, v%d, v%d"%(y[r][1],y[r][1],t))
        k.e("v_cvt_pk_bf16_f32 v%d, v%d, v%d"%(d[r],y[r][0],y[r][1])); k.e("buffer_store_dword v%d, v%d, s[36:39], s27 offen offset:%d"%(d[r],off,256*r))
        k.e("v_lshlrev_b32 v%d, 16, v%d"%(y[r][0],d[r])); k.e("v_and_b32 v%d, 0xffff0000, v%d"%(y[r][1],d[r])); k.f(t); xs+=list(y[r])
    k.layernorm(xs)
    k.e("s_nop 2")
    for r in range(5):
        t=k.a(); k.e("v_cvt_pk_bf16_f32 v%d, v%d, v%d"%(t,xs[2*r],xs[2*r+1])); k.e("buffer_store_dword v%d, v%d, s[44:47], s27 offen offset:%d"%(t,off,256*r))
    return k.end()

def k_prep(name):
    k=K(name); n1=1105920//256; nW=(657408+255)//256; k.prologue(2*n1+nW)
    t=k.a(); k.e("s_lshl_b32 s27, s2, 8"); k.e("v_add_u32 v%d, s27, v0"%t)
    a_=k.a(); b_=k.a(); d=k.a(); q=k.a()
    k.e("s_cmp_ge_u32 s2, %d"%(2*n1)); k.e("s_cbranch_scc1 L_W_%s"%name)
    k.e("s_cmp_ge_u32 s2, %d"%n1); k.e("s_cbranch_scc1 L_w2_%s"%name)
    def tr(srcs,dstoff,Kd,Nd,sub):
        k.srd(28,srcs,0,Kd*Nd*2); k.srd(32,24,dstoff,Kd*Nd*2)
        if sub: k.e("v_subrev_u32 v%d, %d, v%d"%(t,sub,t))
        M=(1<<32)//Kd+1
        k.e("s_mov_b32 s40, 0x%x"%M); k.e("v_mul_hi_u32 v%d, s40, v%d"%(q,t)); k.e("s_mov_b32 s40, %d"%Kd); k.e("v_mul_lo_u32 v%d, s40, v%d"%(a_,q)); k.e("v_sub_u32 v%d, v%d, v%d"%(a_,t,a_))
        k.e("s_mov_b32 s40, %d"%Nd); k.e("v_mul_lo_u32 v%d, s40, v%d"%(a_,a_)); k.e("v_add_u32 v%d, v%d, v%d"%(a_,a_,q)); k.e("v_lshlrev_b32 v%d, 1, v%d"%(a_,a_))
        k.e("buffer_load_ushort v%d, v%d, s[28:31], 0 offen"%(d,a_)); k.e("v_lshlrev_b32 v%d, 1, v%d"%(b_,t)); k.e("s_waitcnt vmcnt(0)"); k.e("buffer_store_short v%d, v%d, s[32:35], 0 offen"%(d,b_)); k.e("s_endpgm")
    tr(12,OFF['W1T'],640,1728,0)
    k.L.append("L_w2_%s:"%name); tr(16,OFF['W2T'],1728,640,1105920)
    k.L.append("L_W_%s:"%name)
    k.srd(28,6,0,657408*2); k.srd(36,8,0,657408*2); k.srd(32,24,OFF['WT'],657408*4)
    k.e("v_subrev_u32 v%d, %d, v%d"%(t,2*1105920,t))
    k.e("v_lshrrev_b32 v%d, 11, v%d"%(q,t)); k.e("v_and_b32 v%d, 2047, v%d"%(a_,t)); k.e("s_mov_b32 s40, 321"); k.e("v_mul_lo_u32 v%d, s40, v%d"%(a_,a_)); k.e("v_add_u32 v%d, v%d, v%d"%(a_,a_,q)); k.e("v_lshlrev_b32 v%d, 1, v%d"%(a_,a_))
    k.e("buffer_load_ushort v%d, v%d, s[28:31], 0 offen"%(d,a_)); k.e("buffer_load_ushort v%d, v%d, s[36:39], 0 offen"%(q,a_)); k.e("v_lshlrev_b32 v%d, 2, v%d"%(b_,t)); k.e("s_waitcnt vmcnt(0)")
    k.e("v_lshlrev_b32 v%d, 16, v%d"%(q,q)); k.e("v_or_b32 v%d, v%d, v%d"%(d,d,q)); k.e("buffer_store_dword v%d, v%d, s[32:35], 0 offen"%(d,b_))
    return k.end()

def k_gemm1(name):
    k=K(name); k.prologue(256)
    k.srd(28,24,OFF['XN'],SZX); k.srd(32,24,OFF['W1T'],1728*640*2); k.srd(36,24,OFF['H'],2048*1728*2); k.srd(44,14,0,1728*2)
    lane=lanewave(k)
    k.e("s_and_b32 s27, s2, 63"); k.e("s_lshr_b32 s40, s2, 6")
    l15=k.a(); l4=k.a(); k.e("v_and_b32 v%d, 15, v%d"%(l15,lane)); k.e("v_lshrrev_b32 v%d, 4, v%d"%(l4,lane))
    fo=k.a(); k.e("v_mul_u32_u24 v%d, 1280, v%d"%(fo,l15)); t=k.a(); k.e("v_lshlrev_b32 v%d, 4, v%d"%(t,l4)); k.e("v_add_u32 v%d, v%d, v%d"%(fo,fo,t))
    k.e("s_mul_i32 s41, s27, %d"%(32*1280))
    xf=k.a(160,4)
    for mt in range(2):
        for ks in range(20):
            b=xf+(mt*20+ks)*4; k.e("s_add_u32 s42, s41, %d"%(mt*16*1280)); k.e("buffer_load_dwordx4 v[%d:%d], v%d, s[28:31], s42 offen offset:%d"%(b,b+3,fo,ks*64))
    k.e("s_mul_i32 s41, s40, %d"%(432*1280)); k.e("s_mul_i32 s42, s26, %d"%(16*1280)); k.e("s_add_u32 s41, s41, s42")
    D=12; ring=k.a(4*D,4); acc=k.a(8,4)
    bo=k.a(); k.e("s_mul_i32 s43, s40, 432"); k.e("s_lshl_b32 s42, s26, 4"); k.e("s_add_u32 s43, s43, s42")
    k.e("v_lshlrev_b32 v%d, 2, v%d"%(bo,l4)); k.e("v_add_u32 v%d, s43, v%d"%(bo,bo)); k.e("v_lshlrev_b32 v%d, 1, v%d"%(bo,bo))
    ho=k.a(); k.e("s_lshl_b32 s42, s27, 5"); k.e("v_add_u32 v%d, s42, v%d"%(ho,l15)); k.e("s_mov_b32 s42, 3456"); k.e("v_mul_lo_u32 v%d, s42, v%d"%(ho,ho)); k.e("v_add_u32 v%d, v%d, v%d"%(ho,ho,bo))
    bias=k.a(14,2)
    for i in range(7): k.e("buffer_load_dwordx2 v[%d:%d], v%d, s[44:47], 0 offen offset:%d"%(bias+2*i,bias+2*i+1,bo,i*128))
    steps=[(i,ks) for i in range(7) for ks in range(20)]
    def ld(n):
        i,ks=steps[n]; b=ring+(n%D)*4
        k.e("s_add_u32 s48, s41, %d"%(i*64*1280)); k.e("buffer_load_dwordx4 v[%d:%d], v%d, s[32:35], s48 offen offset:%d"%(b,b+3,fo,ks*64))
    for n in range(D): ld(n)
    tmp=[k.a() for _ in range(6)]
    for n,(i,ks) in enumerate(steps):
        if i==6 and ks==0: k.e("s_cmp_eq_u32 s26, 3"); k.e("s_cbranch_scc1 L_end_%s"%name)
        if ks==0:
            for r in range(8): k.e("v_mov_b32 v%d, 0"%(acc+r))
        k.e("s_waitcnt vmcnt(0)" if (ks==0) else "s_waitcnt vmcnt(%d)"%min(D-1,len(steps)-1-n))
        b=ring+(n%D)*4
        k.e("s_nop 1")
        for mt in range(2):
            x=xf+(mt*20+ks)*4; k.e("v_mfma_f32_16x16x32_bf16 v[%d:%d], v[%d:%d], v[%d:%d], v[%d:%d]"%(acc+4*mt,acc+4*mt+3,b,b+3,x,x+3,acc+4*mt,acc+4*mt+3))
        if n+D<len(steps): ld(n+D)
        if ks==19:
            k.e("s_nop 7"); k.e("s_nop 3")
            for mt in range(2):
                for r in range(4):
                    a_=acc+4*mt+r; bb=tmp[0]; u=tmp[1]; w=tmp[2]
                    k.bfround(a_)
                    k.e(("v_lshlrev_b32 v%d, 16, v%d" if r%2==0 else "v_and_b32 v%d, 0xffff0000, v%d")%(bb,bias+2*i+r//2)); k.e("v_add_f32 v%d, v%d, v%d"%(a_,a_,bb)); k.bfround(a_)
                    k.e("v_mul_f32 v%d, v%d, v%d"%(u,a_,a_)); k.e("v_mul_f32 v%d, %s, v%d"%(u,f2u(0.044715),u)); k.e("v_fma_f32 v%d, v%d, v%d, v%d"%(u,u,a_,a_))
                    k.e("v_mul_f32 v%d, %s, v%d"%(u,f2u(2*math.sqrt(2/math.pi)*math.log2(math.e)),u)); k.e("v_exp_f32 v%d, v%d"%(u,u)); k.e("s_nop 0"); k.e("v_add_f32 v%d, 1.0, v%d"%(u,u)); k.e("v_rcp_f32 v%d, v%d"%(u,u)); k.e("s_nop 0")
                    k.e("v_sub_f32 v%d, 1.0, v%d"%(u,u)); k.e("v_mul_f32 v%d, v%d, v%d"%(a_,a_,u))
                o=k.a(2,2)
                k.e("v_cvt_pk_bf16_f32 v%d, v%d, v%d"%(o,acc+4*mt,acc+4*mt+1)); k.e("v_cvt_pk_bf16_f32 v%d, v%d, v%d"%(o+1,acc+4*mt+2,acc+4*mt+3))
                k.e("s_mov_b32 s49, %d"%(mt*16*3456)); k.e("buffer_store_dwordx2 v[%d:%d], v%d, s[36:39], s49 offen offset:%d"%(o,o+1,ho,i*128)); k.e("s_nop 1"); k.fr(o,2)
    return k.end()

def k_gemm2(name,res,dst):
    k=K(name); k.prologue(256)
    k.srd(28,24,OFF['H'],2048*1728*2); k.srd(32,24,OFF['W2T'],1728*640*2); k.srd(44,18,0,640*2); k.srd(48,24,res,SZX)
    if dst is None: k.srd(36,20,0,SZX)
    else: k.srd(36,24,dst,SZX)
    lane=lanewave(k)
    k.e("s_and_b32 s27, s2, 31"); k.e("s_lshr_b32 s40, s2, 5")
    l15=k.a(); l4=k.a(); k.e("v_and_b32 v%d, 15, v%d"%(l15,lane)); k.e("v_lshrrev_b32 v%d, 4, v%d"%(l4,lane))
    fo=k.a(); k.e("v_mul_u32_u24 v%d, 3456, v%d"%(fo,l15)); t=k.a(); k.e("v_lshlrev_b32 v%d, 4, v%d"%(t,l4)); k.e("v_add_u32 v%d, v%d, v%d"%(fo,fo,t))
    k.e("s_mul_i32 s41, s26, 14"); k.e("s_cmp_eq_u32 s26, 3"); k.e("s_cselect_b32 s41, 41, s41"); k.e("s_lshl_b32 s41, s41, 6")
    k.e("s_mul_i32 s42, s27, %d"%(64*3456)); k.e("s_add_u32 s42, s42, s41"); k.e("s_mul_i32 s43, s40, %d"%(80*3456)); k.e("s_add_u32 s43, s43, s41")
    acc=k.a(80,4)
    for r in range(80): k.e("v_mov_b32 v%d, 0"%(acc+r))
    S=3; fr=k.a(36*S,4)
    def ld(n):
        b=fr+(n%S)*36
        for mt in range(4): k.e("s_add_u32 s52, s42, %d"%(mt*16*3456)); k.e("buffer_load_dwordx4 v[%d:%d], v%d, s[28:31], s52 offen offset:%d"%(b+4*mt,b+4*mt+3,fo,n*64))
        for nt in range(5): k.e("s_add_u32 s52, s43, %d"%(nt*16*3456)); k.e("buffer_load_dwordx4 v[%d:%d], v%d, s[32:35], s52 offen offset:%d"%(b+16+4*nt,b+19+4*nt,fo,n*64))
    ld(0); ld(1)
    for n in range(14):
        if n==13: k.e("s_cmp_ge_u32 s26, 2"); k.e("s_cbranch_scc1 L_red_%s"%name)
        if n+2<14: ld(n+2)
        k.e("s_waitcnt vmcnt(%d)"%(9*min(2,13-n)))
        b=fr+(n%S)*36
        for nt in range(5):
            for mt in range(4):
                c=acc+(nt*4+mt)*4; k.e("v_mfma_f32_16x16x32_bf16 v[%d:%d], v[%d:%d], v[%d:%d], v[%d:%d]"%(c,c+3,b+16+4*nt,b+19+4*nt,b+4*mt,b+4*mt+3,c,c+3))
    k.L.append("L_red_%s:"%name)
    k.e("s_waitcnt vmcnt(0)"); k.e("s_nop 7"); k.e("s_nop 3")
    la=k.a(); k.e("v_lshlrev_b32 v%d, 4, v%d"%(la,lane)); k.e("s_mul_i32 s41, s26, 20480"); k.e("v_add_u32 v%d, s41, v%d"%(la,la))
    for tl in range(20): k.e("ds_write_b128 v%d, v[%d:%d] offset:%d"%(la,acc+4*tl,acc+4*tl+3,tl*1024))
    k.e("s_waitcnt lgkmcnt(0)"); k.e("s_barrier")
    k.e("v_lshlrev_b32 v%d, 4, v%d"%(la,lane)); k.e("s_mul_i32 s41, s26, 5120"); k.e("v_add_u32 v%d, s41, v%d"%(la,la)); la2=k.a(); k.e("v_add_u32 v%d, 40960, v%d"%(la2,la))
    for j in range(5):
        q=[k.a(4,4) for _ in range(4)]
        for w in range(4): k.e("ds_read_b128 v[%d:%d], v%d offset:%d"%(q[w],q[w]+3,la if w<2 else la2,(w%2)*20480+j*1024))
        k.e("s_mul_i32 s41, s26, 5"); k.e("s_add_u32 s41, s41, %d"%j); k.e("s_lshr_b32 s42, s41, 2"); k.e("s_and_b32 s41, s41, 3")
        no=k.a(); oo=k.a(); bq=k.a(2,2); xq=k.a(2,2)
        k.e("s_mul_i32 s43, s40, 80"); k.e("s_lshl_b32 s42, s42, 4"); k.e("s_add_u32 s43, s43, s42"); k.e("v_lshlrev_b32 v%d, 2, v%d"%(no,l4)); k.e("v_add_u32 v%d, s43, v%d"%(no,no)); k.e("v_lshlrev_b32 v%d, 1, v%d"%(no,no))
        k.e("s_lshl_b32 s43, s27, 6"); k.e("s_lshl_b32 s41, s41, 4"); k.e("s_add_u32 s43, s43, s41"); k.e("v_add_u32 v%d, s43, v%d"%(oo,l15)); k.e("v_mul_u32_u24 v%d, 1280, v%d"%(oo,oo)); k.e("v_add_u32 v%d, v%d, v%d"%(oo,oo,no))
        k.e("buffer_load_dwordx2 v[%d:%d], v%d, s[44:47], 0 offen"%(bq,bq+1,no)); k.e("buffer_load_dwordx2 v[%d:%d], v%d, s[48:51], 0 offen"%(xq,xq+1,oo))
        k.e("s_waitcnt vmcnt(0) lgkmcnt(0)")
        for r in range(4):
            a_=q[0]+r
            for w in range(1,4): k.e("v_add_f32 v%d, v%d, v%d"%(a_,a_,q[w]+r))
            k.bfround(a_)
            for src in (bq,xq):
                k.e(("v_lshlrev_b32 v%d, 16, v%d" if r%2==0 else "v_and_b32 v%d, 0xffff0000, v%d")%(no,src+r//2)); k.e("v_add_f32 v%d, v%d, v%d"%(a_,a_,no))
                if src==bq: k.bfround(a_)
        k.e("v_cvt_pk_bf16_f32 v%d, v%d, v%d"%(bq,q[0],q[0]+1)); k.e("v_cvt_pk_bf16_f32 v%d, v%d, v%d"%(bq+1,q[0]+2,q[0]+3))
        k.e("buffer_store_dwordx2 v[%d:%d], v%d, s[36:39], 0 offen"%(bq,bq+1,oo)); k.e("s_nop 1")
        for w in range(4): k.fr(q[w],4)
        k.f(no,oo); k.fr(bq,2); k.fr(xq,2)
    return k.end()

ks=[("prep_kernel",k_prep,(),8640+2568,256,0),
 ("rf1_kernel",k_rowfft,(('in',4),),256,512,8*RS),("col1_kernel",k_col,(),321,256,32768),("ri1_kernel",k_rowinv,(('in',4),OFF['X1']),256,512,8*RS),
 ("g1a_kernel",k_gemm1,(),256,256,0),("g2a_kernel",k_gemm2,(OFF['X1'],OFF['X2']),256,256,81920),
 ("rf2_kernel",k_rowfft,(('ws',OFF['X2']),),256,512,8*RS),("col2_kernel",k_col,(),321,256,32768),("ri2_kernel",k_rowinv,(('ws',OFF['X2']),OFF['X3']),256,512,8*RS),
 ("g1b_kernel",k_gemm1,(),256,256,0),("g2b_kernel",k_gemm2,(OFF['X3'],None),256,256,81920)]
head="".join("; @launch kernel=%s grid=(%d,1,1) block=(%d,1,1) lds=%d\n"%(n,g,b,l) for n,_,_,g,b,l in ks)
txt=[];desc=[]
for n,fn,args,_,_,_ in ks:
    a,b=fn(n,*args); txt.append(a); desc.append(b)
open(sys.argv[1],"w").write(head+'.amdgcn_target "amdgcn-amd-amdhsa--gfx950"\n.text\n'+"".join(txt)+'.section .rodata,"a"\n'+"".join(desc))
```

```python
import math, sys
NAME="interleave_layers__spectral_gfnet__dense_activation_gelu__prompt"
OFF=dict(XT=0,WT=0x600000,W1T=0x900000,W2T=0xC00000,X1=0xF00000,XN=0x1200000,H=0x1500000,X2=0x1C00000,X3=0x1F00000)
SZX=2048*640*2
def f2u(x):
    import struct; return "0x%08x"%struct.unpack("<I",struct.pack("<f",x))[0]
class K:
    def __init__(s,name,nv=256):
        s.name=name; s.L=[]; s.free=list(range(nv-1,0,-1)); s.hi=0
    def e(s,t): s.L.append("    "+t)
    def a(s,n=1,al=1):
        if n==1:
            r=min(s.free); s.free.remove(r); s.hi=max(s.hi,r); return r
        fs=set(s.free)
        for b in range(1,256):
            if b%al==0 and all((b+i) in fs for i in range(n)):
                for i in range(n): s.free.remove(b+i)
                s.hi=max(s.hi,b+n-1); return b
        raise Exception("regs")
    def f(s,*rs):
        for r in rs:
            if isinstance(r,tuple): s.f(*r)
            else:
                assert r not in s.free; s.free.append(r)
    def fr(s,b,n): s.f(*range(b,b+n))
    def prologue(s,nwg):
        s.e("s_cmp_ge_u32 s2, %d"%nwg); s.e("s_cbranch_scc1 L_end_%s"%s.name)
        s.e("s_load_dwordx16 s[4:19], s[0:1], 0"); s.e("s_load_dwordx4 s[20:23], s[0:1], 64"); s.e("s_load_dwordx2 s[24:25], s[0:1], 80")
        s.e("s_waitcnt lgkmcnt(0)")
    def srd(s,d,base,off,size):
        s.e("s_add_u32 s%d, s%d, 0x%x"%(d,base,off)); s.e("s_addc_u32 s%d, s%d, 0"%(d+1,base+1))
        s.e("s_mov_b32 s%d, 0x%x"%(d+2,size)); s.e("s_mov_b32 s%d, 0x00020000"%(d+3))
    def cadd(s,a,b):
        r=(s.a(),s.a()); s.e("v_add_f32 v%d, v%d, v%d"%(r[0],a[0],b[0])); s.e("v_add_f32 v%d, v%d, v%d"%(r[1],a[1],b[1])); return r
    def csub(s,a,b):
        r=(s.a(),s.a()); s.e("v_sub_f32 v%d, v%d, v%d"%(r[0],a[0],b[0])); s.e("v_sub_f32 v%d, v%d, v%d"%(r[1],a[1],b[1])); return r
    def addmi(s,a,b,sg):
        r=(s.a(),s.a())
        if sg>0: s.e("v_add_f32 v%d, v%d, v%d"%(r[0],a[0],b[1])); s.e("v_sub_f32 v%d, v%d, v%d"%(r[1],a[1],b[0]))
        else: s.e("v_sub_f32 v%d, v%d, v%d"%(r[0],a[0],b[1])); s.e("v_add_f32 v%d, v%d, v%d"%(r[1],a[1],b[0]))
        return r
    def bf4(s,a,inv):
        t0=s.cadd(a[0],a[2]); t1=s.csub(a[0],a[2]); t2=s.cadd(a[1],a[3]); t3=s.csub(a[1],a[3]); s.f(*a)
        y0=s.cadd(t0,t2); y2=s.csub(t0,t2); sg=-1 if inv else 1
        y1=s.addmi(t1,t3,sg); y3=s.addmi(t1,t3,-sg); s.f(t0,t1,t2,t3); return [y0,y1,y2,y3]
    def bf8(s,a,inv):
        E=s.bf4([a[0],a[2],a[4],a[6]],inv); O=s.bf4([a[1],a[3],a[5],a[7]],inv)
        h=f2u(math.sqrt(0.5)); sg=-1 if inv else 1
        for idx,neg in ((1,False),(3,True)):
            o=O[idx]; n=(s.a(),s.a())
            if sg>0: s.e("v_add_f32 v%d, v%d, v%d"%(n[0],o[0],o[1])); s.e("v_sub_f32 v%d, v%d, v%d"%(n[1],o[1],o[0]))
            else: s.e("v_sub_f32 v%d, v%d, v%d"%(n[0],o[0],o[1])); s.e("v_add_f32 v%d, v%d, v%d"%(n[1],o[1],o[0]))
            s.e("v_mul_f32 v%d, %s, v%d"%(n[0],h,n[0])); s.e("v_mul_f32 v%d, %s, v%d"%(n[1],h,n[1])); s.f(o)
            O[idx]=n
        y=[None]*8
        y[0]=s.cadd(E[0],O[0]); y[4]=s.csub(E[0],O[0])
        y[1]=s.cadd(E[1],O[1]); y[5]=s.csub(E[1],O[1])
        y[2]=s.addmi(E[2],O[2],sg); y[6]=s.addmi(E[2],O[2],-sg)
        y[3]=s.addmi(E[3],O[3],sg); y[7]=s.addmi(E[3],O[3],-sg)
        s.f(*E); s.f(*O); return y
    def bf5(s,a,inv):
        c1,c2=f2u(math.cos(2*math.pi/5)),f2u(math.cos(4*math.pi/5)); s1,s2=f2u(math.sin(2*math.pi/5)),f2u(math.sin(4*math.pi/5)); ns1=f2u(-math.sin(2*math.pi/5))
        t1=s.cadd(a[1],a[4]); t2=s.cadd(a[2],a[3]); t3=s.csub(a[1],a[4]); t4=s.csub(a[2],a[3])
        y0=s.cadd(a[0],t1); y0b=s.cadd(y0,t2); s.f(y0); y0=y0b
        m1=(s.a(),s.a()); m2=(s.a(),s.a()); n1=(s.a(),s.a()); n2=(s.a(),s.a())
        for c in (0,1):
            s.e("v_mov_b32 v%d, v%d"%(m1[c],a[0][c])); s.e("v_fmac_f32 v%d, %s, v%d"%(m1[c],c1,t1[c])); s.e("v_fmac_f32 v%d, %s, v%d"%(m1[c],c2,t2[c]))
            s.e("v_mov_b32 v%d, v%d"%(m2[c],a[0][c])); s.e("v_fmac_f32 v%d, %s, v%d"%(m2[c],c2,t1[c])); s.e("v_fmac_f32 v%d, %s, v%d"%(m2[c],c1,t2[c]))
            s.e("v_mul_f32 v%d, %s, v%d"%(n1[c],s1,t3[c])); s.e("v_fmac_f32 v%d, %s, v%d"%(n1[c],s2,t4[c]))
            s.e("v_mul_f32 v%d, %s, v%d"%(n2[c],s2,t3[c])); s.e("v_fmac_f32 v%d, %s, v%d"%(n2[c],ns1,t4[c]))
        s.f(*a); s.f(t1,t2,t3,t4); sg=-1 if inv else 1
        y1=s.addmi(m1,n1,sg); y4=s.addmi(m1,n1,-sg); y2=s.addmi(m2,n2,sg); y3=s.addmi(m2,n2,-sg); s.f(m1,m2,n1,n2)
        return [y0,y1,y2,y3,y4]
    def bf(s,a,inv): return {4:s.bf4,8:s.bf8,5:s.bf5}[len(a)](a,inv)
    def cmul(s,v,c,sn,neg):
        r=(s.a(),s.a()); p,m=("","-") if not neg else ("-","")
        s.e("v_mul_f32 v%d, v%d, v%d"%(r[0],v[0],c)); s.e("v_fma_f32 v%d, %sv%d, v%d, v%d"%(r[0],m,v[1],sn,r[0]))
        s.e("v_mul_f32 v%d, v%d, v%d"%(r[1],v[1],c)); s.e("v_fma_f32 v%d, %sv%d, v%d, v%d"%(r[1],p,v[0],sn,r[1]))
        s.f(v); return r
    def twiddle(s,v,kf,inv):
        for r in range(1,len(v)):
            t=s.a(); c=s.a(); sn=s.a()
            s.e("v_mul_f32 v%d, %s, v%d"%(t,f2u(float(r)),kf)); s.e("v_cos_f32 v%d, v%d"%(c,t)); s.e("v_sin_f32 v%d, v%d"%(sn,t)); s.e("s_nop 0")
            v[r]=s.cmul(v[r],c,sn,not inv); s.f(t,c,sn)
    def bfround(s,r):
        s.e("v_cvt_pk_bf16_f32 v%d, v%d, v%d"%(r,r,r)); s.e("v_lshlrev_b32 v%d, 16, v%d"%(r,r))
    def wsum(s,v,sd):
        t=s.a()
        for o in (0x041F,0x081F,0x101F,0x201F,0x401F):
            s.e("ds_swizzle_b32 v%d, v%d offset:0x%x"%(t,v,o)); s.e("s_waitcnt lgkmcnt(0)"); s.e("v_add_f32 v%d, v%d, v%d"%(v,v,t))
        s.e("s_nop 1"); s.e("v_readlane_b32 s%d, v%d, 32"%(sd,v)); s.e("s_nop 3"); s.e("v_add_f32 v%d, s%d, v%d"%(v,sd,v)); s.e("s_nop 1"); s.e("v_readlane_b32 s%d, v%d, 0"%(sd,v)); s.e("s_nop 3")
        s.f(t)
    def layernorm(s,x):
        t=s.a(); u=s.a(); mean=s.a()
        s.e("v_add_f32 v%d, v%d, v%d"%(t,x[0],x[1]))
        for r in x[2:]: s.e("v_add_f32 v%d, v%d, v%d"%(t,t,r))
        s.wsum(t,60); s.e("v_mov_b32 v%d, s60"%mean); s.e("v_mul_f32 v%d, %s, v%d"%(mean,f2u(1/640),mean))
        s.e("v_mov_b32 v%d, 0"%t)
        for r in x: s.e("v_sub_f32 v%d, v%d, v%d"%(u,r,mean)); s.e("v_fmac_f32 v%d, v%d, v%d"%(t,u,u))
        s.wsum(t,60); s.e("v_mov_b32 v%d, s60"%t); s.e("v_mul_f32 v%d, %s, v%d"%(t,f2u(1/640),t))
        s.bfround(mean); s.bfround(t); s.e("v_add_f32 v%d, %s, v%d"%(t,f2u(1e-5),t)); s.bfround(t)
        s.e("v_sqrt_f32 v%d, v%d"%(t,t)); s.e("s_nop 0"); s.bfround(t); s.e("v_rcp_f32 v%d, v%d"%(t,t)); s.e("s_nop 0")
        for r in x:
            s.e("v_sub_f32 v%d, v%d, v%d"%(r,r,mean)); s.bfround(r); s.e("v_mul_f32 v%d, v%d, v%d"%(r,r,t)); s.bfround(r)
        s.f(t,u,mean)
    def end(s,lds=0):
        s.L.append("L_end_%s:"%s.name); s.e("s_endpgm")
        nv=(s.hi+8)//8*8
        return ".globl %s\n.p2align 8\n.type %s,@function\n%s:\n"%(s.name,s.name,s.name)+"\n".join(s.L)+"\n", \
          ".p2align 6\n.amdhsa_kernel %s\n  .amdhsa_next_free_vgpr %d\n  .amdhsa_next_free_sgpr 102\n  .amdhsa_accum_offset %d\n  .amdhsa_group_segment_fixed_size 0\n  .amdhsa_kernarg_size 88\n  .amdhsa_user_sgpr_count 2\n  .amdhsa_user_sgpr_kernarg_segment_ptr 1\n  .amdhsa_system_sgpr_workgroup_id_x 1\n.end_amdhsa_kernel\n"%(s.name,nv,nv)
RS=2576
class VM:
    def __init__(s,k): s.q=[]; s.k=k
    def issue(s,tag): s.q.append(tag)
    def wait(s,tag):
        if tag not in s.q: return
        i=len(s.q)-1-s.q[::-1].index(tag); n=len(s.q)-1-i; assert n<63
        s.k.e("s_waitcnt vmcnt(%d)"%n); s.q=s.q[i+1:]
def lds_rw(k,op,v,addr,offs):
    for c,o in zip(v,offs):
        if op=='w':
            t=k.a(2,2); k.e("v_mov_b32 v%d, v%d"%(t,c[0])); k.e("v_mov_b32 v%d, v%d"%(t+1,c[1])); k.e("ds_write_b64 v%d, v[%d:%d] offset:%d"%(addr,t,t+1,o)); k.fr(t,2)
def lds_read(k,addr,offs):
    out=[]
    for o in offs:
        t=k.a(2,2); k.e("ds_read_b64 v[%d:%d], v%d offset:%d"%(t,t+1,addr,o)); out.append((t,t+1))
    k.e("s_waitcnt lgkmcnt(0)"); return out
def lanewave(k):
    lane=k.a(); k.e("v_and_b32 v%d, 63, v0"%lane); w=k.a(); k.e("v_lshrrev_b32 v%d, 6, v0"%w); k.e("s_nop 1"); k.e("v_readfirstlane_b32 s26, v%d"%w); k.e("s_nop 3"); k.f(w); return lane
def tofloat(k,r,scale):
    k.e("v_cvt_f32_u32 v%d, v%d"%(r,r)); k.e("v_mul_f32 v%d, %s, v%d"%(r,f2u(scale),r))

def k_rowfft(name,src):
    k=K(name); k.prologue(256)
    if src[0]=='in': k.srd(28,src[1],0,SZX)
    else: k.srd(28,24,src[1],SZX)
    k.srd(32,24,OFF['XT'],321*2048*8)
    lane=lanewave(k)
    k.e("s_lshl_b32 s27, s2, 3"); k.e("s_add_u32 s27, s27, s26"); k.e("s_mul_i32 s27, s27, 1280")
    off=k.a(); k.e("v_lshlrev_b32 v%d, 2, v%d"%(off,lane))
    d=[k.a() for _ in range(5)]
    for r in range(5): k.e("buffer_load_dword v%d, v%d, s[28:31], s27 offen offset:%d"%(d[r],off,256*r))
    k.e("s_waitcnt vmcnt(0)")
    z=[]
    for r in range(5):
        lo=k.a(); k.e("v_lshlrev_b32 v%d, 16, v%d"%(lo,d[r])); k.e("v_and_b32 v%d, 0xffff0000, v%d"%(d[r],d[r])); z.append((lo,d[r]))
    k.layernorm([q for c in z for q in c])
    y=k.bf(z,False)
    base=k.a(); k.e("s_mul_i32 s27, s26, %d"%RS)
    k.e("v_mul_u32_u24 v%d, 40, v%d"%(base,lane)); k.e("v_add_u32 v%d, s27, v%d"%(base,base))
    lds_rw(k,'w',y,base,[8*r for r in range(5)]); k.f(*y)
    k.e("s_waitcnt lgkmcnt(0)"); k.e("s_mov_b64 s[40:41], exec"); k.e("s_mov_b32 s42, -1"); k.e("s_mov_b32 s43, 0xff"); k.e("s_mov_b64 exec, s[42:43]")
    rd=k.a(); k.e("v_lshlrev_b32 v%d, 3, v%d"%(rd,lane)); k.e("v_add_u32 v%d, s27, v%d"%(rd,rd))
    v=lds_read(k,rd,[320*r for r in range(8)])
    q=k.a(); kk=k.a(); k.e("v_mul_u32_u24 v%d, 205, v%d"%(q,lane)); k.e("v_lshrrev_b32 v%d, 10, v%d"%(q,q)); k.e("v_mul_u32_u24 v%d, 5, v%d"%(kk,q)); k.e("v_sub_u32 v%d, v%d, v%d"%(kk,lane,kk))
    k.e("v_mul_u32_u24 v%d, 40, v%d"%(q,q)); k.e("v_add_u32 v%d, v%d, v%d"%(q,q,kk)); k.e("v_lshlrev_b32 v%d, 3, v%d"%(q,q)); k.e("v_add_u32 v%d, s27, v%d"%(q,q))
    tofloat(k,kk,1/40); k.twiddle(v,kk,False); y=k.bf(v,False); lds_rw(k,'w',y,q,[40*r for r in range(8)]); k.f(*y)
    k.e("s_waitcnt lgkmcnt(0)")
    v=lds_read(k,rd,[320*r for r in range(8)])
    k.e("v_mov_b32 v%d, v%d"%(kk,lane)); tofloat(k,kk,1/320); k.twiddle(v,kk,False); y=k.bf(v,False); lds_rw(k,'w',y,rd,[320*r for r in range(8)]); k.f(*y)
    k.e("s_mov_b64 exec, s[40:41]"); k.e("s_waitcnt lgkmcnt(0)"); k.e("s_barrier")
    row=k.a(); k0=k.a(); k.e("v_and_b32 v%d, 7, v0"%row); k.e("v_lshrrev_b32 v%d, 3, v0"%k0)
    rb=k.a(); k.e("v_mul_u32_u24 v%d, %d, v%d"%(rb,RS,row))
    k.e("s_lshl_b32 s27, s2, 3"); k.e("v_add_u32 v%d, s27, v%d"%(row,row))
    for i in range(6):
        kv=k.a(); k.e("v_add_u32 v%d, %d, v%d"%(kv,64*i,k0))
        if i==5: k.e("v_cmp_eq_u32 vcc, 320, v%d"%kv); k.e("s_and_saveexec_b64 s[40:41], vcc")
        a1=k.a(); a2=k.a()
        k.e("v_cmp_eq_u32 vcc, 320, v%d"%kv); k.e("v_cndmask_b32 v%d, v%d, 0, vcc"%(a1,kv))
        k.e("v_sub_u32 v%d, 320, v%d"%(a2,kv)); k.e("v_cmp_eq_u32 vcc, 0, v%d"%kv); k.e("v_cndmask_b32 v%d, v%d, 0, vcc"%(a2,a2))
        for a_ in (a1,a2): k.e("v_lshlrev_b32 v%d, 3, v%d"%(a_,a_)); k.e("v_add_u32 v%d, v%d, v%d"%(a_,a_,rb))
        A=lds_read(k,a1,[0])[0]; B=lds_read(k,a2,[0])[0]
        xe=(k.a(),k.a()); xo=(k.a(),k.a())
        k.e("v_add_f32 v%d, v%d, v%d"%(xe[0],A[0],B[0])); k.e("v_sub_f32 v%d, v%d, v%d"%(xe[1],A[1],B[1])); k.e("v_sub_f32 v%d, v%d, v%d"%(xo[0],A[0],B[0])); k.e("v_add_f32 v%d, v%d, v%d"%(xo[1],A[1],B[1]))
        c=k.a(); sn=k.a(); k.e("v_mov_b32 v%d, v%d"%(a1,kv)); tofloat(k,a1,1/640); k.e("v_cos_f32 v%d, v%d"%(c,a1)); k.e("v_sin_f32 v%d, v%d"%(sn,a1)); k.e("s_nop 0")
        o=k.a(2,2)
        k.e("v_fma_f32 v%d, -v%d, v%d, v%d"%(o,sn,xo[0],xe[0])); k.e("v_fma_f32 v%d, v%d, v%d, v%d"%(o,c,xo[1],o))
        k.e("v_fma_f32 v%d, -v%d, v%d, v%d"%(o+1,sn,xo[1],xe[1])); k.e("v_fma_f32 v%d, -v%d, v%d, v%d"%(o+1,c,xo[0],o+1))
        k.e("v_mul_f32 v%d, 0.5, v%d"%(o,o)); k.e("v_mul_f32 v%d, 0.5, v%d"%(o+1,o+1))
        k.e("v_lshlrev_b32 v%d, 11, v%d"%(kv,kv)); k.e("v_add_u32 v%d, v%d, v%d"%(kv,kv,row)); k.e("v_lshlrev_b32 v%d, 3, v%d"%(kv,kv))
        k.e("buffer_store_dwordx2 v[%d:%d], v%d, s[32:35], 0 offen"%(o,o+1,kv)); k.e("s_nop 1")
        k.fr(o,2); k.f(kv,a1,a2,A,B,xe,xo,c,sn)
    return k.end()

def k_col(name):
    k=K(name); k.prologue(321)
    k.e("s_mul_i32 s27, s2, %d"%(2048*8)); k.e("s_lshl_b32 s26, s2, 13")
    k.srd(28,24,OFF['XT'],321*2048*8); k.srd(32,24,OFF['WT'],321*2048*4)
    off=k.a(); k.e("v_lshlrev_b32 v%d, 3, v0"%off)
    v=[]
    for r in range(8):
        t=k.a(2,2); k.e("s_add_u32 s40, s27, %d"%(2048*r)); k.e("buffer_load_dwordx2 v[%d:%d], v%d, s[28:31], s40 offen"%(t,t+1,off)); v.append((t,t+1))
    woff=k.a(); k.e("v_lshlrev_b32 v%d, 2, v0"%woff); wv=[k.a() for _ in range(8)]
    for r in range(8): k.e("s_add_u32 s40, s26, %d"%(1024*r)); k.e("buffer_load_dword v%d, v%d, s[32:35], s40 offen"%(wv[r],woff))
    k.e("s_waitcnt vmcnt(8)")
    buf=[0]
    def fft(v,inv):
        y=k.bf(v,inv)
        for p,(Ns,R) in enumerate(((8,8),(64,8),(512,4))):
            pR=len(y) if p==0 else 8
            pNs=Ns//8
            wa=k.a(); t=k.a()
            k.e("v_and_b32 v%d, %d, v0"%(t,pNs-1)); k.e("v_lshrrev_b32 v%d, %d, v0"%(wa,int(math.log2(pNs)))); k.e("v_lshlrev_b32 v%d, %d, v%d"%(wa,int(math.log2(pNs*8)),wa)); k.e("v_add_u32 v%d, v%d, v%d"%(wa,wa,t)); k.e("v_lshlrev_b32 v%d, 3, v%d"%(wa,wa))
            B=buf[0]*16384; buf[0]^=1
            lds_rw(k,'w',y,wa,[B+8*pNs*r for r in range(8)]); k.f(*y); k.f(wa,t)
            k.e("s_waitcnt lgkmcnt(0)"); k.e("s_barrier")
            if R==8:
                v=lds_read(k,off,[B+2048*r for r in range(8)])
                kk=k.a(); k.e("v_and_b32 v%d, %d, v0"%(kk,Ns-1)); tofloat(k,kk,1/(Ns*R)); k.twiddle(v,kk,inv); k.f(kk); y=k.bf(v,inv)
            else:
                y=[None]*8
                for h in range(2):
                    v=lds_read(k,off,[B+2048*h+4096*r for r in range(4)])
                    kk=k.a(); k.e("v_add_u32 v%d, %d, v0"%(kk,256*h)); tofloat(k,kk,1/2048); k.twiddle(v,kk,inv); k.f(kk); yy=k.bf(v,inv)
                    for r in range(4): y[h+2*r]=yy[r]
        return y
    y=fft(v,False)
    k.e("s_waitcnt vmcnt(0)")
    sc=f2u(1/(2048*640))
    for r in range(8):
        c=k.a(); sn=k.a(); k.e("v_lshlrev_b32 v%d, 16, v%d"%(c,wv[r])); k.e("v_and_b32 v%d, 0xffff0000, v%d"%(sn,wv[r])); k.e("v_mul_f32 v%d, %s, v%d"%(c,sc,c)); k.e("v_mul_f32 v%d, %s, v%d"%(sn,sc,sn))
        y[r]=k.cmul(y[r],c,sn,False); k.f(c,sn)
    y=fft(y,True)
    for r in range(8):
        t=k.a(2,2); k.e("v_mov_b32 v%d, v%d"%(t,y[r][0])); k.e("v_mov_b32 v%d, v%d"%(t+1,y[r][1])); k.e("s_add_u32 s40, s27, %d"%(2048*r)); k.e("buffer_store_dwordx2 v[%d:%d], v%d, s[28:31], s40 offen"%(t,t+1,off))
    return k.end()

def k_rowinv(name,src,dst):
    k=K(name); k.prologue(256)
    if src[0]=='in': k.srd(28,src[1],0,SZX)
    else: k.srd(28,24,src[1],SZX)
    k.srd(32,24,OFF['XT'],321*2048*8); k.srd(36,24,dst,SZX); k.srd(44,24,OFF['XN'],SZX)
    lane=lanewave(k)
    row=k.a(); k0=k.a(); k.e("v_and_b32 v%d, 7, v0"%row); k.e("v_lshrrev_b32 v%d, 3, v0"%k0)
    rb=k.a(); k.e("v_mul_u32_u24 v%d, %d, v%d"%(rb,RS,row))
    k.e("s_lshl_b32 s27, s2, 3"); k.e("v_add_u32 v%d, s27, v%d"%(row,row))
    tt=k.a(12,2); kvs=[k.a() for _ in range(6)]; ad=k.a()
    for i in range(6):
        kv=kvs[i]; t=tt+2*i; k.e("v_add_u32 v%d, %d, v%d"%(kv,64*i,k0))
        k.e("v_lshlrev_b32 v%d, 11, v%d"%(ad,kv)); k.e("v_add_u32 v%d, v%d, v%d"%(ad,ad,row)); k.e("v_lshlrev_b32 v%d, 3, v%d"%(ad,ad))
        k.e("buffer_load_dwordx2 v[%d:%d], v%d, s[32:35], 0 offen"%(t,t+1,ad))
    k.e("s_waitcnt vmcnt(0)")
    for i in range(6):
        kv=kvs[i]; t=tt+2*i
        if i==5: k.e("v_cmp_eq_u32 vcc, 320, v%d"%kv); k.e("s_and_saveexec_b64 s[40:41], vcc")
        if i in (0,5):
            k.e("v_cmp_eq_u32 vcc, %d, v%d"%(64*i,kv)); k.e("s_nop 1"); k.e("v_cndmask_b32 v%d, v%d, 0, vcc"%(t+1,t+1))
        k.e("v_lshlrev_b32 v%d, 3, v%d"%(ad,kv)); k.e("v_add_u32 v%d, v%d, v%d"%(ad,ad,rb)); k.e("ds_write_b64 v%d, v[%d:%d]"%(ad,t,t+1))
    k.e("s_waitcnt lgkmcnt(0)"); k.fr(tt,12); k.f(*kvs); k.f(ad)
    k.e("s_mov_b64 exec, s[40:41]"); k.e("s_barrier")
    k.e("s_mul_i32 s27, s26, %d"%RS)
    rd=k.a(); k.e("v_lshlrev_b32 v%d, 3, v%d"%(rd,lane)); k.e("v_add_u32 v%d, s27, v%d"%(rd,rd))
    k.e("s_mov_b32 s42, -1"); k.e("s_mov_b32 s43, 0xff"); k.e("s_mov_b64 exec, s[42:43]")
    rv=k.a(); k.e("v_lshlrev_b32 v%d, 3, v%d"%(rv,lane)); k.e("v_sub_u32 v%d, %d, v%d"%(rv,320*8-7*320,rv)); k.e("v_add_u32 v%d, s27, v%d"%(rv,rv))
    A=lds_read(k,rd,[320*r for r in range(8)]); B=lds_read(k,rv,[320*(7-r) for r in range(8)])
    v=[]
    for r in range(8):
        xe=(k.a(),k.a()); xo=(k.a(),k.a()); a_,b_=A[r],B[r]
        k.e("v_add_f32 v%d, v%d, v%d"%(xe[0],a_[0],b_[0])); k.e("v_sub_f32 v%d, v%d, v%d"%(xe[1],a_[1],b_[1])); k.e("v_sub_f32 v%d, v%d, v%d"%(xo[0],a_[0],b_[0])); k.e("v_add_f32 v%d, v%d, v%d"%(xo[1],a_[1],b_[1]))
        t=k.a(); c=k.a(); sn=k.a(); k.e("v_add_u32 v%d, %d, v%d"%(t,40*r,lane)); tofloat(k,t,1/640); k.e("v_cos_f32 v%d, v%d"%(c,t)); k.e("v_sin_f32 v%d, v%d"%(sn,t)); k.e("s_nop 0")
        k.e("v_fma_f32 v%d, -v%d, v%d, v%d"%(xe[0],sn,xo[0],xe[0])); k.e("v_fma_f32 v%d, -v%d, v%d, v%d"%(xe[0],c,xo[1],xe[0]))
        k.e("v_fma_f32 v%d, -v%d, v%d, v%d"%(xe[1],sn,xo[1],xe[1])); k.e("v_fma_f32 v%d, v%d, v%d, v%d"%(xe[1],c,xo[0],xe[1]))
        k.f(t,c,sn,xo,a_,b_); v.append(xe)
    y=k.bf(v,True)
    wa=k.a(); k.e("v_lshlrev_b32 v%d, 6, v%d"%(wa,lane)); k.e("v_add_u32 v%d, s27, v%d"%(wa,wa))
    lds_rw(k,'w',y,wa,[8*r for r in range(8)]); k.f(*y); k.e("s_waitcnt lgkmcnt(0)")
    v=lds_read(k,rd,[320*r for r in range(8)])
    kk=k.a(); k.e("v_and_b32 v%d, 7, v%d"%(kk,lane)); k.e("v_lshrrev_b32 v%d, 3, v%d"%(wa,lane)); k.e("v_lshlrev_b32 v%d, 6, v%d"%(wa,wa)); k.e("v_add_u32 v%d, v%d, v%d"%(wa,wa,kk)); k.e("v_lshlrev_b32 v%d, 3, v%d"%(wa,wa)); k.e("v_add_u32 v%d, s27, v%d"%(wa,wa))
    tofloat(k,kk,1/64); k.twiddle(v,kk,True); y=k.bf(v,True); lds_rw(k,'w',y,wa,[64*r for r in range(8)]); k.f(*y)
    k.e("s_mov_b64 exec, s[40:41]"); k.e("s_waitcnt lgkmcnt(0)")
    v=lds_read(k,rd,[512*r for r in range(5)])
    k.e("v_mov_b32 v%d, v%d"%(kk,lane)); tofloat(k,kk,1/320); k.twiddle(v,kk,True); y=k.bf(v,True)
    k.e("s_lshl_b32 s27, s2, 3"); k.e("s_add_u32 s27, s27, s26"); k.e("s_mul_i32 s27, s27, 1280")
    off=k.a(); k.e("v_lshlrev_b32 v%d, 2, v%d"%(off,lane))
    d=[k.a() for _ in range(5)]
    for r in range(5): k.e("buffer_load_dword v%d, v%d, s[28:31], s27 offen offset:%d"%(d[r],off,256*r))
    k.e("s_waitcnt vmcnt(0)")
    xs=[]
    for r in range(5):
        k.bfround(y[r][0]); k.bfround(y[r][1]); t=k.a()
        k.e("v_lshlrev_b32 v%d, 16, v%d"%(t,d[r])); k.e("v_add_f32 v%d, v%d, v%d"%(y[r][0],y[r][0],t)); k.e("v_and_b32 v%d, 0xffff0000, v%d"%(t,d[r])); k.e("v_add_f32 v%d, v%d, v%d"%(y[r][1],y[r][1],t))
        k.e("v_cvt_pk_bf16_f32 v%d, v%d, v%d"%(d[r],y[r][0],y[r][1])); k.e("buffer_store_dword v%d, v%d, s[36:39], s27 offen offset:%d"%(d[r],off,256*r))
        k.e("v_lshlrev_b32 v%d, 16, v%d"%(y[r][0],d[r])); k.e("v_and_b32 v%d, 0xffff0000, v%d"%(y[r][1],d[r])); k.f(t); xs+=list(y[r])
    k.layernorm(xs)
    k.e("s_nop 2")
    for r in range(5):
        t=k.a(); k.e("v_cvt_pk_bf16_f32 v%d, v%d, v%d"%(t,xs[2*r],xs[2*r+1])); k.e("buffer_store_dword v%d, v%d, s[44:47], s27 offen offset:%d"%(t,off,256*r))
    return k.end()

def k_prep(name):
    k=K(name); k.prologue(732)
    r5=k.a(); c5=k.a(); k.e("v_lshrrev_b32 v%d, 5, v0"%r5); k.e("v_and_b32 v%d, 31, v0"%c5)
    go=k.a(); lo=k.a(); d=k.a(16); t=k.a()
    k.e("s_cmp_ge_u32 s2, 540"); k.e("s_cbranch_scc1 L_W_%s"%name)
    k.e("s_cmp_ge_u32 s2, 270"); k.e("s_cbranch_scc1 L_w2_%s"%name)
    def tr(srcs,dstoff,Kd,Nd,sub):
        k.srd(28,srcs,0,Kd*Nd*2); k.srd(32,24,dstoff,Kd*Nd*2)
        nk=Kd//64
        k.e("s_sub_u32 s27, s2, %d"%sub); k.e("s_mov_b32 s40, 0x%x"%((1<<32)//nk+1)); k.e("s_mul_hi_u32 s41, s27, s40"); k.e("s_mul_i32 s42, s41, %d"%nk); k.e("s_sub_u32 s42, s27, s42")
        k.e("s_mul_i32 s43, s42, %d"%(64*Nd*2)); k.e("s_lshl_b32 s44, s41, 7"); k.e("s_add_u32 s43, s43, s44")
        k.e("s_mul_i32 s45, s41, %d"%(64*Kd*2)); k.e("s_lshl_b32 s44, s42, 7"); k.e("s_add_u32 s45, s45, s44")
        k.e("s_mov_b32 s40, %d"%(Nd*2)); k.e("v_mul_lo_u32 v%d, s40, v%d"%(go,r5)); k.e("v_lshlrev_b32 v%d, 2, v%d"%(t,c5)); k.e("v_add_u32 v%d, v%d, v%d"%(go,go,t))
        k.e("v_mul_u32_u24 v%d, 132, v%d"%(lo,r5)); k.e("v_add_u32 v%d, v%d, v%d"%(lo,lo,t))
        for i in range(8): k.e("s_add_u32 s46, s43, %d"%(i*8*Nd*2)); k.e("buffer_load_dword v%d, v%d, s[28:31], s46 offen"%(d+i,go))
        k.e("s_waitcnt vmcnt(0)")
        for i in range(8): k.e("ds_write_b32 v%d, v%d offset:%d"%(lo,d+i,i*8*132))
        k.e("s_waitcnt lgkmcnt(0)"); k.e("s_barrier")
        k.e("v_mul_u32_u24 v%d, 264, v%d"%(lo,c5)); k.e("v_lshlrev_b32 v%d, 1, v%d"%(go,r5)); k.e("v_add_u32 v%d, v%d, v%d"%(lo,lo,go))
        for i in range(8): k.e("ds_read_u16 v%d, v%d offset:%d"%(d+i,lo,i*16)); k.e("ds_read_u16 v%d, v%d offset:%d"%(d+8+i,lo,i*16+132))
        k.e("s_mov_b32 s40, %d"%(Kd*2)); k.e("v_mul_lo_u32 v%d, s40, v%d"%(go,r5)); k.e("v_add_u32 v%d, v%d, v%d"%(go,go,t))
        k.e("s_waitcnt lgkmcnt(0)")
        for i in range(8):
            k.e("v_lshl_or_b32 v%d, v%d, 16, v%d"%(d+i,d+8+i,d+i)); k.e("s_add_u32 s46, s45, %d"%(i*8*Kd*2)); k.e("buffer_store_dword v%d, v%d, s[32:35], s46 offen"%(d+i,go))
        k.e("s_endpgm")
    tr(12,OFF['W1T'],640,1728,0)
    k.L.append("L_w2_%s:"%name); tr(16,OFF['W2T'],1728,640,270)
    k.L.append("L_W_%s:"%name)
    k.srd(28,6,0,657408*2); k.srd(36,8,0,657408*2); k.srd(32,24,OFF['WT'],657408*4)
    k.e("s_sub_u32 s27, s2, 540"); k.e("s_and_b32 s41, s27, 31"); k.e("s_lshr_b32 s42, s27, 5")
    k.e("v_lshrrev_b32 v%d, 6, v0"%r5); k.e("v_and_b32 v%d, 63, v0"%c5)
    k.e("s_mul_i32 s43, s41, %d"%(64*642)); k.e("s_lshl_b32 s44, s42, 7"); k.e("s_add_u32 s43, s43, s44")
    k.e("v_mul_u32_u24 v%d, 642, v%d"%(go,r5)); k.e("v_lshlrev_b32 v%d, 1, v%d"%(t,c5)); k.e("v_add_u32 v%d, v%d, v%d"%(go,go,t))
    k.e("v_mul_u32_u24 v%d, 260, v%d"%(lo,r5)); k.e("v_lshlrev_b32 v%d, 2, v%d"%(t,c5)); k.e("v_add_u32 v%d, v%d, v%d"%(lo,lo,t))
    for h in range(2):
        for i in range(8):
            k.e("s_add_u32 s46, s43, %d"%((h*8+i)*4*642)); k.e("buffer_load_ushort v%d, v%d, s[28:31], s46 offen"%(d+i,go)); k.e("buffer_load_ushort v%d, v%d, s[36:39], s46 offen"%(d+8+i,go))
        k.e("s_waitcnt vmcnt(0)")
        for i in range(8): k.e("v_lshl_or_b32 v%d, v%d, 16, v%d"%(d+i,d+8+i,d+i)); k.e("ds_write_b32 v%d, v%d offset:%d"%(lo,d+i,(h*8+i)*4*260))
    k.e("s_waitcnt lgkmcnt(0)"); k.e("s_barrier")
    k.e("v_mul_u32_u24 v%d, 260, v%d"%(lo,c5)); k.e("v_lshlrev_b32 v%d, 2, v%d"%(t,r5)); k.e("v_add_u32 v%d, v%d, v%d"%(lo,lo,t))
    for i in range(16): k.e("ds_read_b32 v%d, v%d offset:%d"%(d+i,lo,i*16))
    k.e("s_mul_i32 s45, s42, %d"%(64*8192)); k.e("s_lshl_b32 s44, s41, 8"); k.e("s_add_u32 s45, s45, s44")
    k.e("v_lshlrev_b32 v%d, 13, v%d"%(go,r5)); k.e("v_lshlrev_b32 v%d, 2, v%d"%(t,c5)); k.e("v_add_u32 v%d, v%d, v%d"%(go,go,t))
    k.e("s_waitcnt lgkmcnt(0)")
    for i in range(16): k.e("s_add_u32 s46, s45, %d"%(i*4*8192)); k.e("buffer_store_dword v%d, v%d, s[32:35], s46 offen"%(d+i,go))
    return k.end()

def k_gemm1(name):
    k=K(name); k.prologue(256)
    k.srd(28,24,OFF['XN'],SZX); k.srd(32,24,OFF['W1T'],1728*640*2); k.srd(36,24,OFF['H'],2048*1728*2); k.srd(44,14,0,1728*2)
    lane=lanewave(k)
    k.e("s_and_b32 s27, s2, 31"); k.e("s_lshr_b32 s40, s2, 5"); k.e("s_mul_i32 s40, s40, 27"); k.e("s_lshr_b32 s40, s40, 1"); k.e("s_lshl_b32 s40, s40, 4")
    l15=k.a(); l4=k.a(); k.e("v_and_b32 v%d, 15, v%d"%(l15,lane)); k.e("v_lshrrev_b32 v%d, 4, v%d"%(l4,lane))
    PS=144; BUF=288*PS; NT=14
    go=k.a(); lw=k.a(); t=k.a(); t2=k.a()
    k.e("v_lshrrev_b32 v%d, 3, v0"%t); k.e("v_and_b32 v%d, 7, v0"%t2); k.e("v_lshlrev_b32 v%d, 4, v%d"%(t2,t2))
    k.e("v_mul_u32_u24 v%d, 1280, v%d"%(go,t)); k.e("v_add_u32 v%d, v%d, v%d"%(go,go,t2)); k.e("v_mul_u32_u24 v%d, %d, v%d"%(lw,PS,t)); k.e("v_add_u32 v%d, v%d, v%d"%(lw,lw,t2))
    lw2=k.a(); k.e("v_add_u32 v%d, %d, v%d"%(lw2,BUF,lw))
    k.e("s_mul_i32 s52, s27, %d"%(64*1280)); k.e("s_add_u32 s53, s52, %d"%(32*1280)); k.e("s_mul_i32 s54, s40, 1280")
    for i in range(1,7): k.e("s_add_u32 s%d, s54, %d"%(54+i,i*32*1280))
    ra=k.a(); rw=k.a(); ra2=k.a(); rw2=k.a()
    k.e("v_lshlrev_b32 v%d, 4, v%d"%(t2,l4)); k.e("v_mul_u32_u24 v%d, %d, v%d"%(rw,PS,l15)); k.e("v_add_u32 v%d, v%d, v%d"%(rw,rw,t2)); k.e("s_mul_i32 s41, s26, %d"%(16*PS)); k.e("v_add_u32 v%d, s41, v%d"%(ra,rw)); k.e("v_add_u32 v%d, %d, v%d"%(rw,64*PS,rw))
    k.e("v_add_u32 v%d, %d, v%d"%(ra2,BUF,ra)); k.e("v_add_u32 v%d, %d, v%d"%(rw2,BUF,rw))
    acc=k.a(4*NT,4); st=[k.a(36,4),k.a(36,4)]; fr=k.a(4*(NT+1),4)
    for r in range(4*NT): k.e("v_mov_b32 v%d, 0"%(acc+r))
    def gl(S,off):
        for i in range(9): k.e("buffer_load_dwordx4 v[%d:%d], v%d, s[%s], s%d offen offset:%d"%(S+4*i,S+4*i+3,go,"28:31" if i<2 else "32:35",52+i,off))
    def dw(S,h):
        for i in range(9): k.e("ds_write_b128 v%d, v[%d:%d] offset:%d"%(lw2 if h else lw,S+4*i,S+4*i+3,i*32*PS))
    def comp(h):
        for kk in range(2):
            k.e("ds_read_b128 v[%d:%d], v%d offset:%d"%(fr,fr+3,ra2 if h else ra,64*kk))
            for nt in range(NT): k.e("ds_read_b128 v[%d:%d], v%d offset:%d"%(fr+4+4*nt,fr+7+4*nt,rw2 if h else rw,64*kk+nt*16*PS))
            for nt in range(NT):
                k.e("s_waitcnt lgkmcnt(%d)"%(NT-1-nt)); c=acc+4*nt; k.e("v_mfma_f32_16x16x32_bf16 v[%d:%d], v[%d:%d], v[%d:%d], v[%d:%d]"%(c,c+3,fr+4+4*nt,fr+7+4*nt,fr,fr+3,c,c+3))
    gl(st[0],0); gl(st[1],128); k.e("s_waitcnt vmcnt(9)"); dw(st[0],0); k.e("s_waitcnt lgkmcnt(0)"); k.e("s_barrier"); k.e("s_mov_b32 s62, 0")
    k.L.append("L_loop_%s:"%name)
    for h in range(2):
        gl(st[h],256+128*h); comp(h); k.e("s_waitcnt vmcnt(9)"); dw(st[1-h],1-h); k.e("s_waitcnt lgkmcnt(0)"); k.e("s_barrier")
    for i in range(9): k.e("s_add_u32 s%d, s%d, 256"%(52+i,52+i))
    k.e("s_add_u32 s62, s62, 1"); k.e("s_cmp_lt_u32 s62, 5"); k.e("s_cbranch_scc1 L_loop_%s"%name)
    k.e("s_waitcnt vmcnt(0)"); k.fr(st[0],36); k.fr(st[1],36)
    bo=k.a(); ho=k.a(); bias=k.a(2*NT,2); bb=k.a(); u=k.a()
    k.e("v_lshlrev_b32 v%d, 2, v%d"%(bo,l4)); k.e("v_add_u32 v%d, s40, v%d"%(bo,bo)); k.e("v_lshlrev_b32 v%d, 1, v%d"%(bo,bo))
    k.e("s_lshl_b32 s42, s27, 6"); k.e("s_lshl_b32 s41, s26, 4"); k.e("s_add_u32 s42, s42, s41"); k.e("v_add_u32 v%d, s42, v%d"%(ho,l15)); k.e("s_mov_b32 s42, 3456"); k.e("v_mul_lo_u32 v%d, s42, v%d"%(ho,ho)); k.e("v_add_u32 v%d, v%d, v%d"%(ho,ho,bo))
    for j in range(NT): k.e("buffer_load_dwordx2 v[%d:%d], v%d, s[44:47], 0 offen offset:%d"%(bias+2*j,bias+2*j+1,bo,32*j))
    k.e("s_waitcnt vmcnt(0)")
    for j in range(NT):
        for r in range(4):
            a_=acc+4*j+r
            for t_ in ["v_cvt_pk_bf16_f32 v%d, v%d, v%d"%(a_,a_,a_),"v_lshlrev_b32 v%d, 16, v%d"%(a_,a_),
                    ("v_lshlrev_b32 v%d, 16, v%d" if r%2==0 else "v_and_b32 v%d, 0xffff0000, v%d")%(bb,bias+2*j+r//2),"v_add_f32 v%d, v%d, v%d"%(a_,a_,bb),
                    "v_cvt_pk_bf16_f32 v%d, v%d, v%d"%(a_,a_,a_),"v_lshlrev_b32 v%d, 16, v%d"%(a_,a_),
                    "v_mul_f32 v%d, v%d, v%d"%(u,a_,a_),"v_mul_f32 v%d, %s, v%d"%(u,f2u(0.044715),u),"v_fma_f32 v%d, v%d, v%d, v%d"%(u,u,a_,a_),
                    "v_mul_f32 v%d, %s, v%d"%(u,f2u(2*math.sqrt(2/math.pi)*math.log2(math.e)),u),"v_exp_f32 v%d, v%d"%(u,u),"s_nop 0","v_add_f32 v%d, 1.0, v%d"%(u,u),"v_rcp_f32 v%d, v%d"%(u,u),"s_nop 0",
                    "v_sub_f32 v%d, 1.0, v%d"%(u,u),"v_mul_f32 v%d, v%d, v%d"%(a_,a_,u)]: k.e(t_)
        q=acc+4*j; k.e("v_cvt_pk_bf16_f32 v%d, v%d, v%d"%(bias+2*j,q,q+1)); k.e("v_cvt_pk_bf16_f32 v%d, v%d, v%d"%(bias+2*j+1,q+2,q+3))
        k.e("buffer_store_dwordx2 v[%d:%d], v%d, s[36:39], 0 offen offset:%d"%(bias+2*j,bias+2*j+1,ho,32*j))
    return k.end()

def k_gemm2(name,res,dst):
    k=K(name); k.prologue(256)
    k.srd(28,24,OFF['H'],2048*1728*2); k.srd(32,24,OFF['W2T'],1728*640*2); k.srd(44,18,0,640*2); k.srd(48,24,res,SZX)
    if dst is None: k.srd(36,20,0,SZX)
    else: k.srd(36,24,dst,SZX)
    lane=lanewave(k)
    k.e("s_and_b32 s27, s2, 31"); k.e("s_lshr_b32 s40, s2, 5")
    l15=k.a(); l4=k.a(); k.e("v_and_b32 v%d, 15, v%d"%(l15,lane)); k.e("v_lshrrev_b32 v%d, 4, v%d"%(l4,lane))
    PS=144; BUF=144*PS
    go=k.a(); lw=k.a(); t=k.a(); t2=k.a()
    k.e("v_lshrrev_b32 v%d, 3, v0"%t); k.e("v_and_b32 v%d, 7, v0"%t2); k.e("v_lshlrev_b32 v%d, 4, v%d"%(t2,t2))
    k.e("v_mul_u32_u24 v%d, 3456, v%d"%(go,t)); k.e("v_add_u32 v%d, v%d, v%d"%(go,go,t2)); k.e("v_mul_u32_u24 v%d, %d, v%d"%(lw,PS,t)); k.e("v_add_u32 v%d, v%d, v%d"%(lw,lw,t2))
    k.e("s_mul_i32 s52, s27, %d"%(64*3456)); k.e("s_add_u32 s53, s52, %d"%(32*3456)); k.e("s_mul_i32 s54, s40, %d"%(80*3456)); k.e("s_add_u32 s55, s54, %d"%(32*3456)); k.e("s_add_u32 s56, s54, %d"%(64*3456))
    ra=k.a(); rw=k.a()
    k.e("v_lshlrev_b32 v%d, 4, v%d"%(t2,l4)); k.e("v_mul_u32_u24 v%d, %d, v%d"%(rw,PS,l15)); k.e("v_add_u32 v%d, v%d, v%d"%(rw,rw,t2)); k.e("s_mul_i32 s41, s26, %d"%(16*PS)); k.e("v_add_u32 v%d, s41, v%d"%(ra,rw)); k.e("v_add_u32 v%d, %d, v%d"%(rw,64*PS,rw))
    acc=k.a(20,4); st=[k.a(20,4),k.a(20,4)]; fr=k.a(48,4)
    for r in range(20): k.e("v_mov_b32 v%d, 0"%(acc+r))
    bq=k.a(10,2); xq=k.a(10,2); oo=k.a(); no=k.a()
    k.e("s_mul_i32 s43, s40, 80"); k.e("v_lshlrev_b32 v%d, 2, v%d"%(no,l4)); k.e("v_add_u32 v%d, s43, v%d"%(no,no)); k.e("v_lshlrev_b32 v%d, 1, v%d"%(no,no))
    k.e("s_lshl_b32 s43, s27, 6"); k.e("s_lshl_b32 s41, s26, 4"); k.e("s_add_u32 s43, s43, s41"); k.e("v_add_u32 v%d, s43, v%d"%(oo,l15)); k.e("v_mul_u32_u24 v%d, 1280, v%d"%(oo,oo)); k.e("v_add_u32 v%d, v%d, v%d"%(oo,oo,no))
    for j in range(5): k.e("buffer_load_dwordx2 v[%d:%d], v%d, s[44:47], 0 offen offset:%d"%(bq+2*j,bq+2*j+1,no,32*j)); k.e("buffer_load_dwordx2 v[%d:%d], v%d, s[48:51], 0 offen offset:%d"%(xq+2*j,xq+2*j+1,oo,32*j))
    def gl(S,off):
        for i in range(5):
            k.e("buffer_load_dwordx4 v[%d:%d], v%d, s[%s], s%d offen offset:%d"%(S+4*i,S+4*i+3,go,"28:31" if i<2 else "32:35",52+i,off))
    def dw(S,B):
        for i in range(5):
            if i==4: k.e("s_cmp_ge_u32 s26, 2"); k.e("s_cbranch_scc1 L_%d_%s"%(len(k.L),name)); lab=len(k.L)-1
            k.e("ds_write_b128 v%d, v[%d:%d] offset:%d"%(lw,S+4*i,S+4*i+3,B+i*32*PS))
        k.L.append("L_%d_%s:"%(lab,name))
    def comp(B):
        for kk in range(2):
            f=fr+24*kk
            k.e("ds_read_b128 v[%d:%d], v%d offset:%d"%(f,f+3,ra,B+64*kk))
            for nt in range(5): k.e("ds_read_b128 v[%d:%d], v%d offset:%d"%(f+4+4*nt,f+7+4*nt,rw,B+64*kk+nt*16*PS))
        for kk in range(2):
            f=fr+24*kk; k.e("s_waitcnt lgkmcnt(%d)"%(6 if kk==0 else 0))
            for nt in range(5): c=acc+4*nt; k.e("v_mfma_f32_16x16x32_bf16 v[%d:%d], v[%d:%d], v[%d:%d], v[%d:%d]"%(c,c+3,f+4+4*nt,f+7+4*nt,f,f+3,c,c+3))
    gl(st[0],0); gl(st[1],128); k.e("s_waitcnt vmcnt(5)"); dw(st[0],0); k.e("s_waitcnt lgkmcnt(0)"); k.e("s_barrier"); k.e("s_mov_b32 s62, 0")
    k.L.append("L_loop_%s:"%name)
    for h in range(2):
        gl(st[h],256+128*h); comp(BUF*h); k.e("s_waitcnt vmcnt(5)"); dw(st[1-h],BUF*(1-h)); k.e("s_waitcnt lgkmcnt(0)"); k.e("s_barrier")
    for i in range(5): k.e("s_add_u32 s%d, s%d, 256"%(52+i,52+i))
    k.e("s_add_u32 s62, s62, 1"); k.e("s_cmp_lt_u32 s62, 13"); k.e("s_cbranch_scc1 L_loop_%s"%name)
    comp(0); k.e("s_waitcnt vmcnt(0)"); k.e("s_nop 7"); k.e("s_nop 3")
    for j in range(5):
        q=acc+4*j
        for r in range(4):
            a_=q+r; k.bfround(a_)
            for src in (bq+2*j,xq+2*j):
                k.e(("v_lshlrev_b32 v%d, 16, v%d" if r%2==0 else "v_and_b32 v%d, 0xffff0000, v%d")%(no,src+r//2)); k.e("v_add_f32 v%d, v%d, v%d"%(a_,a_,no))
                if src==bq+2*j: k.bfround(a_)
        k.e("v_cvt_pk_bf16_f32 v%d, v%d, v%d"%(bq+2*j,q,q+1)); k.e("v_cvt_pk_bf16_f32 v%d, v%d, v%d"%(bq+2*j+1,q+2,q+3))
        k.e("buffer_store_dwordx2 v[%d:%d], v%d, s[36:39], 0 offen offset:%d"%(bq+2*j,bq+2*j+1,oo,32*j))
    return k.end()

ks=[("prep_kernel",k_prep,(),732,256,16896),
 ("rf1_kernel",k_rowfft,(('in',4),),256,512,8*RS),("col1_kernel",k_col,(),321,256,32768),("ri1_kernel",k_rowinv,(('in',4),OFF['X1']),256,512,8*RS),
 ("g1a_kernel",k_gemm1,(),256,256,82944),("g2a_kernel",k_gemm2,(OFF['X1'],OFF['X2']),256,256,41472),
 ("rf2_kernel",k_rowfft,(('ws',OFF['X2']),),256,512,8*RS),("col2_kernel",k_col,(),321,256,32768),("ri2_kernel",k_rowinv,(('ws',OFF['X2']),OFF['X3']),256,512,8*RS),
 ("g1b_kernel",k_gemm1,(),256,256,82944),("g2b_kernel",k_gemm2,(OFF['X3'],None),256,256,41472)]
head="".join("; @launch kernel=%s grid=(%d,1,1) block=(%d,1,1) lds=%d\n"%(n,g,b,l) for n,_,_,g,b,l in ks)
txt=[];desc=[]
for n,fn,args,_,_,_ in ks:
    a,b=fn(n,*args); txt.append(a); desc.append(b)
open(sys.argv[1],"w").write(head+'.amdgcn_target "amdgcn-amd-amdhsa--gfx950"\n.text\n'+"".join(txt)+'.section .rodata,"a"\n'+"".join(desc))
```

```python
import math, sys
NAME="interleave_layers__spectral_gfnet__dense_activation_gelu__prompt"
OFF=dict(XT=0,WT=0x600000,W1T=0x900000,W2T=0xC00000,X1=0xF00000,XN=0x1200000,H=0x1500000,X2=0x1C00000,X3=0x1F00000)
SZX=2048*640*2
def f2u(x):
    import struct; return "0x%08x"%struct.unpack("<I",struct.pack("<f",x))[0]
class K:
    def __init__(s,name,nv=256):
        s.name=name; s.L=[]; s.free=list(range(nv-1,0,-1)); s.hi=0
    def e(s,t): s.L.append("    "+t)
    def a(s,n=1,al=1):
        if n==1:
            r=min(s.free); s.free.remove(r); s.hi=max(s.hi,r); return r
        fs=set(s.free)
        for b in range(1,256):
            if b%al==0 and all((b+i) in fs for i in range(n)):
                for i in range(n): s.free.remove(b+i)
                s.hi=max(s.hi,b+n-1); return b
        raise Exception("regs")
    def f(s,*rs):
        for r in rs:
            if isinstance(r,tuple): s.f(*r)
            else:
                assert r not in s.free; s.free.append(r)
    def fr(s,b,n): s.f(*range(b,b+n))
    def prologue(s,nwg):
        s.e("s_cmp_ge_u32 s2, %d"%nwg); s.e("s_cbranch_scc1 L_end_%s"%s.name)
        s.e("s_load_dwordx16 s[4:19], s[0:1], 0"); s.e("s_load_dwordx4 s[20:23], s[0:1], 64"); s.e("s_load_dwordx2 s[24:25], s[0:1], 80")
        s.e("s_waitcnt lgkmcnt(0)")
    def srd(s,d,base,off,size):
        s.e("s_add_u32 s%d, s%d, 0x%x"%(d,base,off)); s.e("s_addc_u32 s%d, s%d, 0"%(d+1,base+1))
        s.e("s_mov_b32 s%d, 0x%x"%(d+2,size)); s.e("s_mov_b32 s%d, 0x00020000"%(d+3))
    def cadd(s,a,b):
        r=(s.a(),s.a()); s.e("v_add_f32 v%d, v%d, v%d"%(r[0],a[0],b[0])); s.e("v_add_f32 v%d, v%d, v%d"%(r[1],a[1],b[1])); return r
    def csub(s,a,b):
        r=(s.a(),s.a()); s.e("v_sub_f32 v%d, v%d, v%d"%(r[0],a[0],b[0])); s.e("v_sub_f32 v%d, v%d, v%d"%(r[1],a[1],b[1])); return r
    def addmi(s,a,b,sg):
        r=(s.a(),s.a())
        if sg>0: s.e("v_add_f32 v%d, v%d, v%d"%(r[0],a[0],b[1])); s.e("v_sub_f32 v%d, v%d, v%d"%(r[1],a[1],b[0]))
        else: s.e("v_sub_f32 v%d, v%d, v%d"%(r[0],a[0],b[1])); s.e("v_add_f32 v%d, v%d, v%d"%(r[1],a[1],b[0]))
        return r
    def bf4(s,a,inv):
        t0=s.cadd(a[0],a[2]); t1=s.csub(a[0],a[2]); t2=s.cadd(a[1],a[3]); t3=s.csub(a[1],a[3]); s.f(*a)
        y0=s.cadd(t0,t2); y2=s.csub(t0,t2); sg=-1 if inv else 1
        y1=s.addmi(t1,t3,sg); y3=s.addmi(t1,t3,-sg); s.f(t0,t1,t2,t3); return [y0,y1,y2,y3]
    def bf8(s,a,inv):
        E=s.bf4([a[0],a[2],a[4],a[6]],inv); O=s.bf4([a[1],a[3],a[5],a[7]],inv)
        h=f2u(math.sqrt(0.5)); sg=-1 if inv else 1
        for idx,neg in ((1,False),(3,True)):
            o=O[idx]; n=(s.a(),s.a())
            if sg>0: s.e("v_add_f32 v%d, v%d, v%d"%(n[0],o[0],o[1])); s.e("v_sub_f32 v%d, v%d, v%d"%(n[1],o[1],o[0]))
            else: s.e("v_sub_f32 v%d, v%d, v%d"%(n[0],o[0],o[1])); s.e("v_add_f32 v%d, v%d, v%d"%(n[1],o[1],o[0]))
            s.e("v_mul_f32 v%d, %s, v%d"%(n[0],h,n[0])); s.e("v_mul_f32 v%d, %s, v%d"%(n[1],h,n[1])); s.f(o)
            O[idx]=n
        y=[None]*8
        y[0]=s.cadd(E[0],O[0]); y[4]=s.csub(E[0],O[0])
        y[1]=s.cadd(E[1],O[1]); y[5]=s.csub(E[1],O[1])
        y[2]=s.addmi(E[2],O[2],sg); y[6]=s.addmi(E[2],O[2],-sg)
        y[3]=s.addmi(E[3],O[3],sg); y[7]=s.addmi(E[3],O[3],-sg)
        s.f(*E); s.f(*O); return y
    def bf5(s,a,inv):
        c1,c2=f2u(math.cos(2*math.pi/5)),f2u(math.cos(4*math.pi/5)); s1,s2=f2u(math.sin(2*math.pi/5)),f2u(math.sin(4*math.pi/5)); ns1=f2u(-math.sin(2*math.pi/5))
        t1=s.cadd(a[1],a[4]); t2=s.cadd(a[2],a[3]); t3=s.csub(a[1],a[4]); t4=s.csub(a[2],a[3])
        y0=s.cadd(a[0],t1); y0b=s.cadd(y0,t2); s.f(y0); y0=y0b
        m1=(s.a(),s.a()); m2=(s.a(),s.a()); n1=(s.a(),s.a()); n2=(s.a(),s.a())
        for c in (0,1):
            s.e("v_mov_b32 v%d, v%d"%(m1[c],a[0][c])); s.e("v_fmac_f32 v%d, %s, v%d"%(m1[c],c1,t1[c])); s.e("v_fmac_f32 v%d, %s, v%d"%(m1[c],c2,t2[c]))
            s.e("v_mov_b32 v%d, v%d"%(m2[c],a[0][c])); s.e("v_fmac_f32 v%d, %s, v%d"%(m2[c],c2,t1[c])); s.e("v_fmac_f32 v%d, %s, v%d"%(m2[c],c1,t2[c]))
            s.e("v_mul_f32 v%d, %s, v%d"%(n1[c],s1,t3[c])); s.e("v_fmac_f32 v%d, %s, v%d"%(n1[c],s2,t4[c]))
            s.e("v_mul_f32 v%d, %s, v%d"%(n2[c],s2,t3[c])); s.e("v_fmac_f32 v%d, %s, v%d"%(n2[c],ns1,t4[c]))
        s.f(*a); s.f(t1,t2,t3,t4); sg=-1 if inv else 1
        y1=s.addmi(m1,n1,sg); y4=s.addmi(m1,n1,-sg); y2=s.addmi(m2,n2,sg); y3=s.addmi(m2,n2,-sg); s.f(m1,m2,n1,n2)
        return [y0,y1,y2,y3,y4]
    def bf(s,a,inv): return {4:s.bf4,8:s.bf8,5:s.bf5}[len(a)](a,inv)
    def cmul(s,v,c,sn,neg):
        r=(s.a(),s.a()); p,m=("","-") if not neg else ("-","")
        s.e("v_mul_f32 v%d, v%d, v%d"%(r[0],v[0],c)); s.e("v_fma_f32 v%d, %sv%d, v%d, v%d"%(r[0],m,v[1],sn,r[0]))
        s.e("v_mul_f32 v%d, v%d, v%d"%(r[1],v[1],c)); s.e("v_fma_f32 v%d, %sv%d, v%d, v%d"%(r[1],p,v[0],sn,r[1]))
        s.f(v); return r
    def twiddle(s,v,kf,inv):
        for r in range(1,len(v)):
            t=s.a(); c=s.a(); sn=s.a()
            s.e("v_mul_f32 v%d, %s, v%d"%(t,f2u(float(r)),kf)); s.e("v_cos_f32 v%d, v%d"%(c,t)); s.e("v_sin_f32 v%d, v%d"%(sn,t)); s.e("s_nop 0")
            v[r]=s.cmul(v[r],c,sn,not inv); s.f(t,c,sn)
    def bfround(s,r):
        s.e("v_cvt_pk_bf16_f32 v%d, v%d, v%d"%(r,r,r)); s.e("v_lshlrev_b32 v%d, 16, v%d"%(r,r))
    def wsum(s,v,sd):
        t=s.a()
        for o in (0x041F,0x081F,0x101F,0x201F,0x401F):
            s.e("ds_swizzle_b32 v%d, v%d offset:0x%x"%(t,v,o)); s.e("s_waitcnt lgkmcnt(0)"); s.e("v_add_f32 v%d, v%d, v%d"%(v,v,t))
        s.e("s_nop 1"); s.e("v_readlane_b32 s%d, v%d, 32"%(sd,v)); s.e("s_nop 3"); s.e("v_add_f32 v%d, s%d, v%d"%(v,sd,v)); s.e("s_nop 1"); s.e("v_readlane_b32 s%d, v%d, 0"%(sd,v)); s.e("s_nop 3")
        s.f(t)
    def layernorm(s,x):
        t=s.a(); u=s.a(); mean=s.a()
        s.e("v_add_f32 v%d, v%d, v%d"%(t,x[0],x[1]))
        for r in x[2:]: s.e("v_add_f32 v%d, v%d, v%d"%(t,t,r))
        s.wsum(t,60); s.e("v_mov_b32 v%d, s60"%mean); s.e("v_mul_f32 v%d, %s, v%d"%(mean,f2u(1/640),mean))
        s.e("v_mov_b32 v%d, 0"%t)
        for r in x: s.e("v_sub_f32 v%d, v%d, v%d"%(u,r,mean)); s.e("v_fmac_f32 v%d, v%d, v%d"%(t,u,u))
        s.wsum(t,60); s.e("v_mov_b32 v%d, s60"%t); s.e("v_mul_f32 v%d, %s, v%d"%(t,f2u(1/640),t))
        s.bfround(mean); s.bfround(t); s.e("v_add_f32 v%d, %s, v%d"%(t,f2u(1e-5),t)); s.bfround(t)
        s.e("v_sqrt_f32 v%d, v%d"%(t,t)); s.e("s_nop 0"); s.bfround(t); s.e("v_rcp_f32 v%d, v%d"%(t,t)); s.e("s_nop 0")
        for r in x:
            s.e("v_sub_f32 v%d, v%d, v%d"%(r,r,mean)); s.bfround(r); s.e("v_mul_f32 v%d, v%d, v%d"%(r,r,t)); s.bfround(r)
        s.f(t,u,mean)
    def end(s,lds=0):
        s.L.append("L_end_%s:"%s.name); s.e("s_endpgm")
        nv=(s.hi+8)//8*8
        return ".globl %s\n.p2align 8\n.type %s,@function\n%s:\n"%(s.name,s.name,s.name)+"\n".join(s.L)+"\n", \
          ".p2align 6\n.amdhsa_kernel %s\n  .amdhsa_next_free_vgpr %d\n  .amdhsa_next_free_sgpr 102\n  .amdhsa_accum_offset %d\n  .amdhsa_group_segment_fixed_size 0\n  .amdhsa_kernarg_size 88\n  .amdhsa_user_sgpr_count 2\n  .amdhsa_user_sgpr_kernarg_segment_ptr 1\n  .amdhsa_system_sgpr_workgroup_id_x 1\n.end_amdhsa_kernel\n"%(s.name,nv,nv)
RS=2576
class VM:
    def __init__(s,k): s.q=[]; s.k=k
    def issue(s,tag): s.q.append(tag)
    def wait(s,tag):
        if tag not in s.q: return
        i=len(s.q)-1-s.q[::-1].index(tag); n=len(s.q)-1-i; assert n<63
        s.k.e("s_waitcnt vmcnt(%d)"%n); s.q=s.q[i+1:]
def lds_rw(k,op,v,addr,offs):
    for c,o in zip(v,offs):
        if op=='w':
            t=k.a(2,2); k.e("v_mov_b32 v%d, v%d"%(t,c[0])); k.e("v_mov_b32 v%d, v%d"%(t+1,c[1])); k.e("ds_write_b64 v%d, v[%d:%d] offset:%d"%(addr,t,t+1,o)); k.fr(t,2)
def lds_read(k,addr,offs):
    out=[]
    for o in offs:
        t=k.a(2,2); k.e("ds_read_b64 v[%d:%d], v%d offset:%d"%(t,t+1,addr,o)); out.append((t,t+1))
    k.e("s_waitcnt lgkmcnt(0)"); return out
def lanewave(k):
    lane=k.a(); k.e("v_and_b32 v%d, 63, v0"%lane); w=k.a(); k.e("v_lshrrev_b32 v%d, 6, v0"%w); k.e("s_nop 1"); k.e("v_readfirstlane_b32 s26, v%d"%w); k.e("s_nop 3"); k.f(w); return lane
def tofloat(k,r,scale):
    k.e("v_cvt_f32_u32 v%d, v%d"%(r,r)); k.e("v_mul_f32 v%d, %s, v%d"%(r,f2u(scale),r))

def k_rowfft(name,src,merge=False):
    k=K(name); k.prologue(256+(732 if merge else 0))
    if merge: k.e("s_cmp_ge_u32 s2, 256"); k.e("s_cbranch_scc1 L_prep_%s"%name)
    if src[0]=='in': k.srd(28,src[1],0,SZX)
    else: k.srd(28,24,src[1],SZX)
    k.srd(32,24,OFF['XT'],321*2048*8)
    lane=lanewave(k)
    k.e("s_lshl_b32 s27, s2, 3"); k.e("s_add_u32 s27, s27, s26"); k.e("s_mul_i32 s27, s27, 1280")
    off=k.a(); k.e("v_lshlrev_b32 v%d, 2, v%d"%(off,lane))
    d=[k.a() for _ in range(5)]
    for r in range(5): k.e("buffer_load_dword v%d, v%d, s[28:31], s27 offen offset:%d"%(d[r],off,256*r))
    k.e("s_waitcnt vmcnt(0)")
    z=[]
    for r in range(5):
        lo=k.a(); k.e("v_lshlrev_b32 v%d, 16, v%d"%(lo,d[r])); k.e("v_and_b32 v%d, 0xffff0000, v%d"%(d[r],d[r])); z.append((lo,d[r]))
    k.layernorm([q for c in z for q in c])
    y=k.bf(z,False)
    base=k.a(); k.e("s_mul_i32 s27, s26, %d"%RS)
    k.e("v_mul_u32_u24 v%d, 40, v%d"%(base,lane)); k.e("v_add_u32 v%d, s27, v%d"%(base,base))
    lds_rw(k,'w',y,base,[8*r for r in range(5)]); k.f(*y)
    k.e("s_waitcnt lgkmcnt(0)"); k.e("s_mov_b64 s[40:41], exec"); k.e("s_mov_b32 s42, -1"); k.e("s_mov_b32 s43, 0xff"); k.e("s_mov_b64 exec, s[42:43]")
    rd=k.a(); k.e("v_lshlrev_b32 v%d, 3, v%d"%(rd,lane)); k.e("v_add_u32 v%d, s27, v%d"%(rd,rd))
    v=lds_read(k,rd,[320*r for r in range(8)])
    q=k.a(); kk=k.a(); k.e("v_mul_u32_u24 v%d, 205, v%d"%(q,lane)); k.e("v_lshrrev_b32 v%d, 10, v%d"%(q,q)); k.e("v_mul_u32_u24 v%d, 5, v%d"%(kk,q)); k.e("v_sub_u32 v%d, v%d, v%d"%(kk,lane,kk))
    k.e("v_mul_u32_u24 v%d, 40, v%d"%(q,q)); k.e("v_add_u32 v%d, v%d, v%d"%(q,q,kk)); k.e("v_lshlrev_b32 v%d, 3, v%d"%(q,q)); k.e("v_add_u32 v%d, s27, v%d"%(q,q))
    tofloat(k,kk,1/40); k.twiddle(v,kk,False); y=k.bf(v,False); lds_rw(k,'w',y,q,[40*r for r in range(8)]); k.f(*y)
    k.e("s_waitcnt lgkmcnt(0)")
    v=lds_read(k,rd,[320*r for r in range(8)])
    k.e("v_mov_b32 v%d, v%d"%(kk,lane)); tofloat(k,kk,1/320); k.twiddle(v,kk,False); y=k.bf(v,False); lds_rw(k,'w',y,rd,[320*r for r in range(8)]); k.f(*y)
    k.e("s_mov_b64 exec, s[40:41]"); k.e("s_waitcnt lgkmcnt(0)"); k.e("s_barrier")
    row=k.a(); k0=k.a(); k.e("v_and_b32 v%d, 7, v0"%row); k.e("v_lshrrev_b32 v%d, 3, v0"%k0)
    rb=k.a(); k.e("v_mul_u32_u24 v%d, %d, v%d"%(rb,RS,row))
    k.e("s_lshl_b32 s27, s2, 3"); k.e("v_add_u32 v%d, s27, v%d"%(row,row))
    for i in range(6):
        kv=k.a(); k.e("v_add_u32 v%d, %d, v%d"%(kv,64*i,k0))
        if i==5: k.e("v_cmp_eq_u32 vcc, 320, v%d"%kv); k.e("s_and_saveexec_b64 s[40:41], vcc")
        a1=k.a(); a2=k.a()
        k.e("v_cmp_eq_u32 vcc, 320, v%d"%kv); k.e("v_cndmask_b32 v%d, v%d, 0, vcc"%(a1,kv))
        k.e("v_sub_u32 v%d, 320, v%d"%(a2,kv)); k.e("v_cmp_eq_u32 vcc, 0, v%d"%kv); k.e("v_cndmask_b32 v%d, v%d, 0, vcc"%(a2,a2))
        for a_ in (a1,a2): k.e("v_lshlrev_b32 v%d, 3, v%d"%(a_,a_)); k.e("v_add_u32 v%d, v%d, v%d"%(a_,a_,rb))
        A=lds_read(k,a1,[0])[0]; B=lds_read(k,a2,[0])[0]
        xe=(k.a(),k.a()); xo=(k.a(),k.a())
        k.e("v_add_f32 v%d, v%d, v%d"%(xe[0],A[0],B[0])); k.e("v_sub_f32 v%d, v%d, v%d"%(xe[1],A[1],B[1])); k.e("v_sub_f32 v%d, v%d, v%d"%(xo[0],A[0],B[0])); k.e("v_add_f32 v%d, v%d, v%d"%(xo[1],A[1],B[1]))
        c=k.a(); sn=k.a(); k.e("v_mov_b32 v%d, v%d"%(a1,kv)); tofloat(k,a1,1/640); k.e("v_cos_f32 v%d, v%d"%(c,a1)); k.e("v_sin_f32 v%d, v%d"%(sn,a1)); k.e("s_nop 0")
        o=k.a(2,2)
        k.e("v_fma_f32 v%d, -v%d, v%d, v%d"%(o,sn,xo[0],xe[0])); k.e("v_fma_f32 v%d, v%d, v%d, v%d"%(o,c,xo[1],o))
        k.e("v_fma_f32 v%d, -v%d, v%d, v%d"%(o+1,sn,xo[1],xe[1])); k.e("v_fma_f32 v%d, -v%d, v%d, v%d"%(o+1,c,xo[0],o+1))
        k.e("v_mul_f32 v%d, 0.5, v%d"%(o,o)); k.e("v_mul_f32 v%d, 0.5, v%d"%(o+1,o+1))
        k.e("v_lshlrev_b32 v%d, 11, v%d"%(kv,kv)); k.e("v_add_u32 v%d, v%d, v%d"%(kv,kv,row)); k.e("v_lshlrev_b32 v%d, 3, v%d"%(kv,kv))
        k.e("buffer_store_dwordx2 v[%d:%d], v%d, s[32:35], 0 offen"%(o,o+1,kv)); k.e("s_nop 1")
        k.fr(o,2); k.f(kv,a1,a2,A,B,xe,xo,c,sn)
    if merge:
        k.e("s_endpgm"); k.L.append("L_prep_%s:"%name)
        k.e("v_lshrrev_b32 v1, 8, v0"); k.e("s_nop 1"); k.e("v_readfirstlane_b32 s26, v1"); k.e("s_nop 3"); k.e("s_cmp_ge_u32 s26, 1"); k.e("s_cbranch_scc1 L_end_%s"%name); k.e("s_sub_u32 s2, s2, 256")
        txt,_=k_prep(name+"p"); L=txt.split("\n"); i=L.index("PREPBODY"); j=[n for n,l in enumerate(L) if l.startswith("L_end_")][0]
        k.L+=L[i+1:j]
    return k.end()

def k_col(name):
    k=K(name); k.prologue(321)
    k.e("s_mul_i32 s27, s2, %d"%(2048*8)); k.e("s_lshl_b32 s26, s2, 13")
    k.srd(28,24,OFF['XT'],321*2048*8); k.srd(32,24,OFF['WT'],321*2048*4)
    off=k.a(); k.e("v_lshlrev_b32 v%d, 3, v0"%off)
    v=[]
    for r in range(8):
        t=k.a(2,2); k.e("s_add_u32 s40, s27, %d"%(2048*r)); k.e("buffer_load_dwordx2 v[%d:%d], v%d, s[28:31], s40 offen"%(t,t+1,off)); v.append((t,t+1))
    woff=k.a(); k.e("v_lshlrev_b32 v%d, 2, v0"%woff); wv=[k.a() for _ in range(8)]
    for r in range(8): k.e("s_add_u32 s40, s26, %d"%(1024*r)); k.e("buffer_load_dword v%d, v%d, s[32:35], s40 offen"%(wv[r],woff))
    k.e("s_waitcnt vmcnt(8)")
    buf=[0]
    def fft(v,inv):
        y=k.bf(v,inv)
        for p,(Ns,R) in enumerate(((8,8),(64,8),(512,4))):
            pR=len(y) if p==0 else 8
            pNs=Ns//8
            wa=k.a(); t=k.a()
            k.e("v_and_b32 v%d, %d, v0"%(t,pNs-1)); k.e("v_lshrrev_b32 v%d, %d, v0"%(wa,int(math.log2(pNs)))); k.e("v_lshlrev_b32 v%d, %d, v%d"%(wa,int(math.log2(pNs*8)),wa)); k.e("v_add_u32 v%d, v%d, v%d"%(wa,wa,t)); k.e("v_lshlrev_b32 v%d, 3, v%d"%(wa,wa))
            B=buf[0]*16384; buf[0]^=1
            lds_rw(k,'w',y,wa,[B+8*pNs*r for r in range(8)]); k.f(*y); k.f(wa,t)
            k.e("s_waitcnt lgkmcnt(0)"); k.e("s_barrier")
            if R==8:
                v=lds_read(k,off,[B+2048*r for r in range(8)])
                kk=k.a(); k.e("v_and_b32 v%d, %d, v0"%(kk,Ns-1)); tofloat(k,kk,1/(Ns*R)); k.twiddle(v,kk,inv); k.f(kk); y=k.bf(v,inv)
            else:
                y=[None]*8
                for h in range(2):
                    v=lds_read(k,off,[B+2048*h+4096*r for r in range(4)])
                    kk=k.a(); k.e("v_add_u32 v%d, %d, v0"%(kk,256*h)); tofloat(k,kk,1/2048); k.twiddle(v,kk,inv); k.f(kk); yy=k.bf(v,inv)
                    for r in range(4): y[h+2*r]=yy[r]
        return y
    y=fft(v,False)
    k.e("s_waitcnt vmcnt(0)")
    sc=f2u(1/(2048*640))
    for r in range(8):
        c=k.a(); sn=k.a(); k.e("v_lshlrev_b32 v%d, 16, v%d"%(c,wv[r])); k.e("v_and_b32 v%d, 0xffff0000, v%d"%(sn,wv[r])); k.e("v_mul_f32 v%d, %s, v%d"%(c,sc,c)); k.e("v_mul_f32 v%d, %s, v%d"%(sn,sc,sn))
        y[r]=k.cmul(y[r],c,sn,False); k.f(c,sn)
    y=fft(y,True)
    for r in range(8):
        t=k.a(2,2); k.e("v_mov_b32 v%d, v%d"%(t,y[r][0])); k.e("v_mov_b32 v%d, v%d"%(t+1,y[r][1])); k.e("s_add_u32 s40, s27, %d"%(2048*r)); k.e("buffer_store_dwordx2 v[%d:%d], v%d, s[28:31], s40 offen"%(t,t+1,off))
    return k.end()

def k_rowinv(name,src,dst):
    k=K(name); k.prologue(256)
    if src[0]=='in': k.srd(28,src[1],0,SZX)
    else: k.srd(28,24,src[1],SZX)
    k.srd(32,24,OFF['XT'],321*2048*8); k.srd(36,24,dst,SZX); k.srd(44,24,OFF['XN'],SZX)
    lane=lanewave(k)
    row=k.a(); k0=k.a(); k.e("v_and_b32 v%d, 7, v0"%row); k.e("v_lshrrev_b32 v%d, 3, v0"%k0)
    rb=k.a(); k.e("v_mul_u32_u24 v%d, %d, v%d"%(rb,RS,row))
    k.e("s_lshl_b32 s27, s2, 3"); k.e("v_add_u32 v%d, s27, v%d"%(row,row))
    tt=k.a(12,2); kvs=[k.a() for _ in range(6)]; ad=k.a()
    for i in range(6):
        kv=kvs[i]; t=tt+2*i; k.e("v_add_u32 v%d, %d, v%d"%(kv,64*i,k0))
        k.e("v_lshlrev_b32 v%d, 11, v%d"%(ad,kv)); k.e("v_add_u32 v%d, v%d, v%d"%(ad,ad,row)); k.e("v_lshlrev_b32 v%d, 3, v%d"%(ad,ad))
        k.e("buffer_load_dwordx2 v[%d:%d], v%d, s[32:35], 0 offen"%(t,t+1,ad))
    k.e("s_waitcnt vmcnt(0)")
    for i in range(6):
        kv=kvs[i]; t=tt+2*i
        if i==5: k.e("v_cmp_eq_u32 vcc, 320, v%d"%kv); k.e("s_and_saveexec_b64 s[40:41], vcc")
        if i in (0,5):
            k.e("v_cmp_eq_u32 vcc, %d, v%d"%(64*i,kv)); k.e("s_nop 1"); k.e("v_cndmask_b32 v%d, v%d, 0, vcc"%(t+1,t+1))
        k.e("v_lshlrev_b32 v%d, 3, v%d"%(ad,kv)); k.e("v_add_u32 v%d, v%d, v%d"%(ad,ad,rb)); k.e("ds_write_b64 v%d, v[%d:%d]"%(ad,t,t+1))
    k.e("s_waitcnt lgkmcnt(0)"); k.fr(tt,12); k.f(*kvs); k.f(ad)
    k.e("s_mov_b64 exec, s[40:41]"); k.e("s_barrier")
    k.e("s_mul_i32 s27, s26, %d"%RS)
    rd=k.a(); k.e("v_lshlrev_b32 v%d, 3, v%d"%(rd,lane)); k.e("v_add_u32 v%d, s27, v%d"%(rd,rd))
    k.e("s_mov_b32 s42, -1"); k.e("s_mov_b32 s43, 0xff"); k.e("s_mov_b64 exec, s[42:43]")
    rv=k.a(); k.e("v_lshlrev_b32 v%d, 3, v%d"%(rv,lane)); k.e("v_sub_u32 v%d, %d, v%d"%(rv,320*8-7*320,rv)); k.e("v_add_u32 v%d, s27, v%d"%(rv,rv))
    A=lds_read(k,rd,[320*r for r in range(8)]); B=lds_read(k,rv,[320*(7-r) for r in range(8)])
    v=[]
    for r in range(8):
        xe=(k.a(),k.a()); xo=(k.a(),k.a()); a_,b_=A[r],B[r]
        k.e("v_add_f32 v%d, v%d, v%d"%(xe[0],a_[0],b_[0])); k.e("v_sub_f32 v%d, v%d, v%d"%(xe[1],a_[1],b_[1])); k.e("v_sub_f32 v%d, v%d, v%d"%(xo[0],a_[0],b_[0])); k.e("v_add_f32 v%d, v%d, v%d"%(xo[1],a_[1],b_[1]))
        t=k.a(); c=k.a(); sn=k.a(); k.e("v_add_u32 v%d, %d, v%d"%(t,40*r,lane)); tofloat(k,t,1/640); k.e("v_cos_f32 v%d, v%d"%(c,t)); k.e("v_sin_f32 v%d, v%d"%(sn,t)); k.e("s_nop 0")
        k.e("v_fma_f32 v%d, -v%d, v%d, v%d"%(xe[0],sn,xo[0],xe[0])); k.e("v_fma_f32 v%d, -v%d, v%d, v%d"%(xe[0],c,xo[1],xe[0]))
        k.e("v_fma_f32 v%d, -v%d, v%d, v%d"%(xe[1],sn,xo[1],xe[1])); k.e("v_fma_f32 v%d, v%d, v%d, v%d"%(xe[1],c,xo[0],xe[1]))
        k.f(t,c,sn,xo,a_,b_); v.append(xe)
    y=k.bf(v,True)
    wa=k.a(); k.e("v_lshlrev_b32 v%d, 6, v%d"%(wa,lane)); k.e("v_add_u32 v%d, s27, v%d"%(wa,wa))
    lds_rw(k,'w',y,wa,[8*r for r in range(8)]); k.f(*y); k.e("s_waitcnt lgkmcnt(0)")
    v=lds_read(k,rd,[320*r for r in range(8)])
    kk=k.a(); k.e("v_and_b32 v%d, 7, v%d"%(kk,lane)); k.e("v_lshrrev_b32 v%d, 3, v%d"%(wa,lane)); k.e("v_lshlrev_b32 v%d, 6, v%d"%(wa,wa)); k.e("v_add_u32 v%d, v%d, v%d"%(wa,wa,kk)); k.e("v_lshlrev_b32 v%d, 3, v%d"%(wa,wa)); k.e("v_add_u32 v%d, s27, v%d"%(wa,wa))
    tofloat(k,kk,1/64); k.twiddle(v,kk,True); y=k.bf(v,True); lds_rw(k,'w',y,wa,[64*r for r in range(8)]); k.f(*y)
    k.e("s_mov_b64 exec, s[40:41]"); k.e("s_waitcnt lgkmcnt(0)")
    v=lds_read(k,rd,[512*r for r in range(5)])
    k.e("v_mov_b32 v%d, v%d"%(kk,lane)); tofloat(k,kk,1/320); k.twiddle(v,kk,True); y=k.bf(v,True)
    k.e("s_lshl_b32 s27, s2, 3"); k.e("s_add_u32 s27, s27, s26"); k.e("s_mul_i32 s27, s27, 1280")
    off=k.a(); k.e("v_lshlrev_b32 v%d, 2, v%d"%(off,lane))
    d=[k.a() for _ in range(5)]
    for r in range(5): k.e("buffer_load_dword v%d, v%d, s[28:31], s27 offen offset:%d"%(d[r],off,256*r))
    k.e("s_waitcnt vmcnt(0)")
    xs=[]
    for r in range(5):
        k.bfround(y[r][0]); k.bfround(y[r][1]); t=k.a()
        k.e("v_lshlrev_b32 v%d, 16, v%d"%(t,d[r])); k.e("v_add_f32 v%d, v%d, v%d"%(y[r][0],y[r][0],t)); k.e("v_and_b32 v%d, 0xffff0000, v%d"%(t,d[r])); k.e("v_add_f32 v%d, v%d, v%d"%(y[r][1],y[r][1],t))
        k.e("v_cvt_pk_bf16_f32 v%d, v%d, v%d"%(d[r],y[r][0],y[r][1])); k.e("buffer_store_dword v%d, v%d, s[36:39], s27 offen offset:%d"%(d[r],off,256*r))
        k.e("v_lshlrev_b32 v%d, 16, v%d"%(y[r][0],d[r])); k.e("v_and_b32 v%d, 0xffff0000, v%d"%(y[r][1],d[r])); k.f(t); xs+=list(y[r])
    k.layernorm(xs)
    k.e("s_nop 2")
    for r in range(5):
        t=k.a(); k.e("v_cvt_pk_bf16_f32 v%d, v%d, v%d"%(t,xs[2*r],xs[2*r+1])); k.e("buffer_store_dword v%d, v%d, s[44:47], s27 offen offset:%d"%(t,off,256*r))
    return k.end()

def k_prep(name):
    k=K(name); k.prologue(732); k.L.append("PREPBODY")
    r5=k.a(); c5=k.a(); k.e("v_lshrrev_b32 v%d, 5, v0"%r5); k.e("v_and_b32 v%d, 31, v0"%c5)
    go=k.a(); lo=k.a(); d=k.a(16); t=k.a()
    k.e("s_cmp_ge_u32 s2, 540"); k.e("s_cbranch_scc1 L_W_%s"%name)
    k.e("s_cmp_ge_u32 s2, 270"); k.e("s_cbranch_scc1 L_w2_%s"%name)
    def tr(srcs,dstoff,Kd,Nd,sub):
        k.srd(28,srcs,0,Kd*Nd*2); k.srd(32,24,dstoff,Kd*Nd*2)
        nk=Kd//64
        k.e("s_sub_u32 s27, s2, %d"%sub); k.e("s_mov_b32 s40, 0x%x"%((1<<32)//nk+1)); k.e("s_mul_hi_u32 s41, s27, s40"); k.e("s_mul_i32 s42, s41, %d"%nk); k.e("s_sub_u32 s42, s27, s42")
        k.e("s_mul_i32 s43, s42, %d"%(64*Nd*2)); k.e("s_lshl_b32 s44, s41, 7"); k.e("s_add_u32 s43, s43, s44")
        k.e("s_mul_i32 s45, s41, %d"%(64*Kd*2)); k.e("s_lshl_b32 s44, s42, 7"); k.e("s_add_u32 s45, s45, s44")
        k.e("s_mov_b32 s40, %d"%(Nd*2)); k.e("v_mul_lo_u32 v%d, s40, v%d"%(go,r5)); k.e("v_lshlrev_b32 v%d, 2, v%d"%(t,c5)); k.e("v_add_u32 v%d, v%d, v%d"%(go,go,t))
        k.e("v_mul_u32_u24 v%d, 132, v%d"%(lo,r5)); k.e("v_add_u32 v%d, v%d, v%d"%(lo,lo,t))
        for i in range(8): k.e("s_add_u32 s46, s43, %d"%(i*8*Nd*2)); k.e("buffer_load_dword v%d, v%d, s[28:31], s46 offen"%(d+i,go))
        k.e("s_waitcnt vmcnt(0)")
        for i in range(8): k.e("ds_write_b32 v%d, v%d offset:%d"%(lo,d+i,i*8*132))
        k.e("s_waitcnt lgkmcnt(0)"); k.e("s_barrier")
        k.e("v_mul_u32_u24 v%d, 264, v%d"%(lo,c5)); k.e("v_lshlrev_b32 v%d, 1, v%d"%(go,r5)); k.e("v_add_u32 v%d, v%d, v%d"%(lo,lo,go))
        for i in range(8): k.e("ds_read_u16 v%d, v%d offset:%d"%(d+i,lo,i*16)); k.e("ds_read_u16 v%d, v%d offset:%d"%(d+8+i,lo,i*16+132))
        k.e("s_mov_b32 s40, %d"%(Kd*2)); k.e("v_mul_lo_u32 v%d, s40, v%d"%(go,r5)); k.e("v_add_u32 v%d, v%d, v%d"%(go,go,t))
        k.e("s_waitcnt lgkmcnt(0)")
        for i in range(8):
            k.e("v_lshl_or_b32 v%d, v%d, 16, v%d"%(d+i,d+8+i,d+i)); k.e("s_add_u32 s46, s45, %d"%(i*8*Kd*2)); k.e("buffer_store_dword v%d, v%d, s[32:35], s46 offen"%(d+i,go))
        k.e("s_endpgm")
    tr(12,OFF['W1T'],640,1728,0)
    k.L.append("L_w2_%s:"%name); tr(16,OFF['W2T'],1728,640,270)
    k.L.append("L_W_%s:"%name)
    k.srd(28,6,0,657408*2); k.srd(36,8,0,657408*2); k.srd(32,24,OFF['WT'],657408*4)
    k.e("s_sub_u32 s27, s2, 540"); k.e("s_and_b32 s41, s27, 31"); k.e("s_lshr_b32 s42, s27, 5")
    k.e("v_lshrrev_b32 v%d, 6, v0"%r5); k.e("v_and_b32 v%d, 63, v0"%c5)
    k.e("s_mul_i32 s43, s41, %d"%(64*642)); k.e("s_lshl_b32 s44, s42, 7"); k.e("s_add_u32 s43, s43, s44")
    k.e("v_mul_u32_u24 v%d, 642, v%d"%(go,r5)); k.e("v_lshlrev_b32 v%d, 1, v%d"%(t,c5)); k.e("v_add_u32 v%d, v%d, v%d"%(go,go,t))
    k.e("v_mul_u32_u24 v%d, 260, v%d"%(lo,r5)); k.e("v_lshlrev_b32 v%d, 2, v%d"%(t,c5)); k.e("v_add_u32 v%d, v%d, v%d"%(lo,lo,t))
    for h in range(2):
        for i in range(8):
            k.e("s_add_u32 s46, s43, %d"%((h*8+i)*4*642)); k.e("buffer_load_ushort v%d, v%d, s[28:31], s46 offen"%(d+i,go)); k.e("buffer_load_ushort v%d, v%d, s[36:39], s46 offen"%(d+8+i,go))
        k.e("s_waitcnt vmcnt(0)")
        for i in range(8): k.e("v_lshl_or_b32 v%d, v%d, 16, v%d"%(d+i,d+8+i,d+i)); k.e("ds_write_b32 v%d, v%d offset:%d"%(lo,d+i,(h*8+i)*4*260))
    k.e("s_waitcnt lgkmcnt(0)"); k.e("s_barrier")
    k.e("v_mul_u32_u24 v%d, 260, v%d"%(lo,c5)); k.e("v_lshlrev_b32 v%d, 2, v%d"%(t,r5)); k.e("v_add_u32 v%d, v%d, v%d"%(lo,lo,t))
    for i in range(16): k.e("ds_read_b32 v%d, v%d offset:%d"%(d+i,lo,i*16))
    k.e("s_mul_i32 s45, s42, %d"%(64*8192)); k.e("s_lshl_b32 s44, s41, 8"); k.e("s_add_u32 s45, s45, s44")
    k.e("v_lshlrev_b32 v%d, 13, v%d"%(go,r5)); k.e("v_lshlrev_b32 v%d, 2, v%d"%(t,c5)); k.e("v_add_u32 v%d, v%d, v%d"%(go,go,t))
    k.e("s_waitcnt lgkmcnt(0)")
    for i in range(16): k.e("s_add_u32 s46, s45, %d"%(i*4*8192)); k.e("buffer_store_dword v%d, v%d, s[32:35], s46 offen"%(d+i,go))
    return k.end()

def k_gemm1(name):
    k=K(name); k.prologue(256)
    k.srd(28,24,OFF['XN'],SZX); k.srd(32,24,OFF['W1T'],1728*640*2); k.srd(36,24,OFF['H'],2048*1728*2); k.srd(44,14,0,1728*2)
    lane=lanewave(k)
    k.e("s_and_b32 s27, s2, 31"); k.e("s_lshr_b32 s40, s2, 5"); k.e("s_mul_i32 s40, s40, 27"); k.e("s_lshr_b32 s40, s40, 1"); k.e("s_lshl_b32 s40, s40, 4")
    l15=k.a(); l4=k.a(); k.e("v_and_b32 v%d, 15, v%d"%(l15,lane)); k.e("v_lshrrev_b32 v%d, 4, v%d"%(l4,lane))
    PS=144; BUF=288*PS; NT=14
    go=k.a(); lw=k.a(); t=k.a(); t2=k.a()
    k.e("v_lshrrev_b32 v%d, 3, v0"%t); k.e("v_and_b32 v%d, 7, v0"%t2); k.e("v_lshlrev_b32 v%d, 4, v%d"%(t2,t2))
    k.e("v_mul_u32_u24 v%d, 1280, v%d"%(go,t)); k.e("v_add_u32 v%d, v%d, v%d"%(go,go,t2)); k.e("v_mul_u32_u24 v%d, %d, v%d"%(lw,PS,t)); k.e("v_add_u32 v%d, v%d, v%d"%(lw,lw,t2))
    lw2=k.a(); k.e("v_add_u32 v%d, %d, v%d"%(lw2,BUF,lw))
    k.e("s_mul_i32 s52, s27, %d"%(64*1280)); k.e("s_add_u32 s53, s52, %d"%(32*1280)); k.e("s_mul_i32 s54, s40, 1280")
    for i in range(1,7): k.e("s_add_u32 s%d, s54, %d"%(54+i,i*32*1280))
    ra=k.a(); rw=k.a(); ra2=k.a(); rw2=k.a()
    k.e("v_lshlrev_b32 v%d, 4, v%d"%(t2,l4)); k.e("v_mul_u32_u24 v%d, %d, v%d"%(rw,PS,l15)); k.e("v_add_u32 v%d, v%d, v%d"%(rw,rw,t2)); k.e("s_mul_i32 s41, s26, %d"%(16*PS)); k.e("v_add_u32 v%d, s41, v%d"%(ra,rw)); k.e("v_add_u32 v%d, %d, v%d"%(rw,64*PS,rw))
    k.e("v_add_u32 v%d, %d, v%d"%(ra2,BUF,ra)); k.e("v_add_u32 v%d, %d, v%d"%(rw2,BUF,rw))
    acc=k.a(4*NT,4); st=[k.a(36,4),k.a(36,4)]; fr=k.a(4*(NT+1),4)
    for r in range(4*NT): k.e("v_mov_b32 v%d, 0"%(acc+r))
    def gl(S,off):
        for i in range(9): k.e("buffer_load_dwordx4 v[%d:%d], v%d, s[%s], s%d offen offset:%d"%(S+4*i,S+4*i+3,go,"28:31" if i<2 else "32:35",52+i,off))
    def dw(S,h):
        for i in range(9): k.e("ds_write_b128 v%d, v[%d:%d] offset:%d"%(lw2 if h else lw,S+4*i,S+4*i+3,i*32*PS))
    def comp(h):
        for kk in range(2):
            k.e("ds_read_b128 v[%d:%d], v%d offset:%d"%(fr,fr+3,ra2 if h else ra,64*kk))
            for nt in range(NT): k.e("ds_read_b128 v[%d:%d], v%d offset:%d"%(fr+4+4*nt,fr+7+4*nt,rw2 if h else rw,64*kk+nt*16*PS))
            for nt in range(NT):
                k.e("s_waitcnt lgkmcnt(%d)"%(NT-1-nt)); c=acc+4*nt; k.e("v_mfma_f32_16x16x32_bf16 v[%d:%d], v[%d:%d], v[%d:%d], v[%d:%d]"%(c,c+3,fr+4+4*nt,fr+7+4*nt,fr,fr+3,c,c+3))
    gl(st[0],0); gl(st[1],128); k.e("s_waitcnt vmcnt(9)"); dw(st[0],0); k.e("s_waitcnt lgkmcnt(0)"); k.e("s_barrier"); k.e("s_mov_b32 s62, 0")
    k.L.append("L_loop_%s:"%name)
    for h in range(2):
        gl(st[h],256+128*h); comp(h); k.e("s_waitcnt vmcnt(9)"); dw(st[1-h],1-h); k.e("s_waitcnt lgkmcnt(0)"); k.e("s_barrier")
    for i in range(9): k.e("s_add_u32 s%d, s%d, 256"%(52+i,52+i))
    k.e("s_add_u32 s62, s62, 1"); k.e("s_cmp_lt_u32 s62, 5"); k.e("s_cbranch_scc1 L_loop_%s"%name)
    k.e("s_waitcnt vmcnt(0)"); k.fr(st[0],36); k.fr(st[1],36)
    bo=k.a(); ho=k.a(); bias=k.a(2*NT,2); bb=k.a(); u=k.a()
    k.e("v_lshlrev_b32 v%d, 2, v%d"%(bo,l4)); k.e("v_add_u32 v%d, s40, v%d"%(bo,bo)); k.e("v_lshlrev_b32 v%d, 1, v%d"%(bo,bo))
    k.e("s_lshl_b32 s42, s27, 6"); k.e("s_lshl_b32 s41, s26, 4"); k.e("s_add_u32 s42, s42, s41"); k.e("v_add_u32 v%d, s42, v%d"%(ho,l15)); k.e("s_mov_b32 s42, 3456"); k.e("v_mul_lo_u32 v%d, s42, v%d"%(ho,ho)); k.e("v_add_u32 v%d, v%d, v%d"%(ho,ho,bo))
    for j in range(NT): k.e("buffer_load_dwordx2 v[%d:%d], v%d, s[44:47], 0 offen offset:%d"%(bias+2*j,bias+2*j+1,bo,32*j))
    k.e("s_waitcnt vmcnt(0)")
    for j in range(NT):
        for r in range(4):
            a_=acc+4*j+r
            for t_ in ["v_cvt_pk_bf16_f32 v%d, v%d, v%d"%(a_,a_,a_),"v_lshlrev_b32 v%d, 16, v%d"%(a_,a_),
                    ("v_lshlrev_b32 v%d, 16, v%d" if r%2==0 else "v_and_b32 v%d, 0xffff0000, v%d")%(bb,bias+2*j+r//2),"v_add_f32 v%d, v%d, v%d"%(a_,a_,bb),
                    "v_cvt_pk_bf16_f32 v%d, v%d, v%d"%(a_,a_,a_),"v_lshlrev_b32 v%d, 16, v%d"%(a_,a_),
                    "v_mul_f32 v%d, v%d, v%d"%(u,a_,a_),"v_mul_f32 v%d, %s, v%d"%(u,f2u(0.044715),u),"v_fma_f32 v%d, v%d, v%d, v%d"%(u,u,a_,a_),
                    "v_mul_f32 v%d, %s, v%d"%(u,f2u(2*math.sqrt(2/math.pi)*math.log2(math.e)),u),"v_exp_f32 v%d, v%d"%(u,u),"s_nop 0","v_add_f32 v%d, 1.0, v%d"%(u,u),"v_rcp_f32 v%d, v%d"%(u,u),"s_nop 0",
                    "v_sub_f32 v%d, 1.0, v%d"%(u,u),"v_mul_f32 v%d, v%d, v%d"%(a_,a_,u)]: k.e(t_)
        q=acc+4*j; k.e("v_cvt_pk_bf16_f32 v%d, v%d, v%d"%(bias+2*j,q,q+1)); k.e("v_cvt_pk_bf16_f32 v%d, v%d, v%d"%(bias+2*j+1,q+2,q+3))
        k.e("buffer_store_dwordx2 v[%d:%d], v%d, s[36:39], 0 offen offset:%d"%(bias+2*j,bias+2*j+1,ho,32*j))
    return k.end()

def k_gemm2(name,res,dst):
    k=K(name); k.prologue(256)
    k.srd(28,24,OFF['H'],2048*1728*2); k.srd(32,24,OFF['W2T'],1728*640*2); k.srd(44,18,0,640*2); k.srd(48,24,res,SZX)
    if dst is None: k.srd(36,20,0,SZX)
    else: k.srd(36,24,dst,SZX)
    lane=lanewave(k)
    k.e("s_and_b32 s27, s2, 31"); k.e("s_lshr_b32 s40, s2, 5")
    l15=k.a(); l4=k.a(); k.e("v_and_b32 v%d, 15, v%d"%(l15,lane)); k.e("v_lshrrev_b32 v%d, 4, v%d"%(l4,lane))
    PS=144; BUF=144*PS; CH=1
    go=k.a(); lw=k.a(); t=k.a(); t2=k.a()
    k.e("v_lshrrev_b32 v%d, 3, v0"%t); k.e("v_and_b32 v%d, 7, v0"%t2); k.e("v_lshlrev_b32 v%d, 4, v%d"%(t2,t2))
    k.e("v_mul_u32_u24 v%d, 3456, v%d"%(go,t)); k.e("v_add_u32 v%d, v%d, v%d"%(go,go,t2)); k.e("v_mul_u32_u24 v%d, %d, v%d"%(lw,PS,t)); k.e("v_add_u32 v%d, v%d, v%d"%(lw,lw,t2))
    k.e("s_mul_i32 s52, s27, %d"%(64*3456)); k.e("s_add_u32 s53, s52, %d"%(32*3456)); k.e("s_mul_i32 s54, s40, %d"%(80*3456)); k.e("s_add_u32 s55, s54, %d"%(32*3456)); k.e("s_add_u32 s56, s54, %d"%(64*3456))
    lw2=k.a(); k.e("v_add_u32 v%d, %d, v%d"%(lw2,BUF,lw)); ra=k.a(); rw=k.a(); ra2=k.a(); rw2=k.a()
    k.e("v_lshlrev_b32 v%d, 4, v%d"%(t2,l4)); k.e("v_mul_u32_u24 v%d, %d, v%d"%(rw,PS,l15)); k.e("v_add_u32 v%d, v%d, v%d"%(rw,rw,t2)); k.e("s_mul_i32 s41, s26, %d"%(16*PS)); k.e("v_add_u32 v%d, s41, v%d"%(ra,rw)); k.e("v_add_u32 v%d, %d, v%d"%(rw,64*PS,rw)); k.e("v_add_u32 v%d, %d, v%d"%(ra2,BUF,ra)); k.e("v_add_u32 v%d, %d, v%d"%(rw2,BUF,rw))
    acc=k.a(20,4); st=[k.a(60,4),k.a(60,4)]; fr=k.a(48,4)
    for r in range(20): k.e("v_mov_b32 v%d, 0"%(acc+r))
    bq=k.a(10,2); xq=k.a(10,2); oo=k.a(); no=k.a()
    k.e("s_mul_i32 s43, s40, 80"); k.e("v_lshlrev_b32 v%d, 2, v%d"%(no,l4)); k.e("v_add_u32 v%d, s43, v%d"%(no,no)); k.e("v_lshlrev_b32 v%d, 1, v%d"%(no,no))
    k.e("s_lshl_b32 s43, s27, 6"); k.e("s_lshl_b32 s41, s26, 4"); k.e("s_add_u32 s43, s43, s41"); k.e("v_add_u32 v%d, s43, v%d"%(oo,l15)); k.e("v_mul_u32_u24 v%d, 1280, v%d"%(oo,oo)); k.e("v_add_u32 v%d, v%d, v%d"%(oo,oo,no))
    for j in range(5): k.e("buffer_load_dwordx2 v[%d:%d], v%d, s[44:47], 0 offen offset:%d"%(bq+2*j,bq+2*j+1,no,32*j)); k.e("buffer_load_dwordx2 v[%d:%d], v%d, s[48:51], 0 offen offset:%d"%(xq+2*j,xq+2*j+1,oo,32*j))
    def gl(S,off):
        for i in range(5):
            for u_ in range(CH): k.e("buffer_load_dwordx4 v[%d:%d], v%d, s[%s], s%d offen offset:%d"%(S+20*u_+4*i,S+20*u_+4*i+3,go,"28:31" if i<2 else "32:35",52+i,off+128*u_))
    def dw(S,B):
        for i in range(5):
            if i==4: k.e("s_cmp_ge_u32 s26, 2"); k.e("s_cbranch_scc1 L_%d_%s"%(len(k.L),name)); lab=len(k.L)-1
            for u_ in range(CH): k.e("ds_write_b128 v%d, v[%d:%d] offset:%d"%(lw2 if B else lw,S+20*u_+4*i,S+20*u_+4*i+3,i*32*PS+128*u_))
        k.L.append("L_%d_%s:"%(lab,name))
    def comp(B):
        for kp in range(CH):
            for kk in range(2):
                f=fr+24*kk
                k.e("ds_read_b128 v[%d:%d], v%d offset:%d"%(f,f+3,ra2 if B else ra,128*kp+64*kk))
                for nt in range(5): k.e("ds_read_b128 v[%d:%d], v%d offset:%d"%(f+4+4*nt,f+7+4*nt,rw2 if B else rw,128*kp+64*kk+nt*16*PS))
            for kk in range(2):
                f=fr+24*kk; k.e("s_waitcnt lgkmcnt(%d)"%(6 if kk==0 else 0))
                for nt in range(5): c=acc+4*nt; k.e("v_mfma_f32_16x16x32_bf16 v[%d:%d], v[%d:%d], v[%d:%d], v[%d:%d]"%(c,c+3,f+4+4*nt,f+7+4*nt,f,f+3,c,c+3))
    gl(st[0],0); gl(st[1],128); k.e("s_waitcnt vmcnt(5)"); dw(st[0],0); k.e("s_waitcnt lgkmcnt(0)"); k.e("s_barrier"); k.e("s_mov_b32 s62, 0")
    k.L.append("L_loop_%s:"%name)
    for h in range(2):
        gl(st[h],256+128*h); comp(h); k.e("s_waitcnt vmcnt(5)"); dw(st[1-h],1-h); k.e("s_waitcnt lgkmcnt(0)"); k.e("s_barrier")
    for i in range(5): k.e("s_add_u32 s%d, s%d, 256"%(52+i,52+i))
    k.e("s_add_u32 s62, s62, 1"); k.e("s_cmp_lt_u32 s62, 13"); k.e("s_cbranch_scc1 L_loop_%s"%name)
    comp(0); k.e("s_waitcnt vmcnt(0)"); k.e("s_nop 7"); k.e("s_nop 3")
    for j in range(5):
        q=acc+4*j
        for r in range(4):
            a_=q+r; k.bfround(a_)
            for src in (bq+2*j,xq+2*j):
                k.e(("v_lshlrev_b32 v%d, 16, v%d" if r%2==0 else "v_and_b32 v%d, 0xffff0000, v%d")%(no,src+r//2)); k.e("v_add_f32 v%d, v%d, v%d"%(a_,a_,no))
                if src==bq+2*j: k.bfround(a_)
        k.e("v_cvt_pk_bf16_f32 v%d, v%d, v%d"%(bq+2*j,q,q+1)); k.e("v_cvt_pk_bf16_f32 v%d, v%d, v%d"%(bq+2*j+1,q+2,q+3))
        k.e("buffer_store_dwordx2 v[%d:%d], v%d, s[36:39], 0 offen offset:%d"%(bq+2*j,bq+2*j+1,oo,32*j))
    return k.end()

ks=[("rf1_kernel",k_rowfft,(('in',4),True),256+732,512,8*RS),("col1_kernel",k_col,(),321,256,32768),("ri1_kernel",k_rowinv,(('in',4),OFF['X1']),256,512,8*RS),
 ("g1a_kernel",k_gemm1,(),256,256,82944),("g2a_kernel",k_gemm2,(OFF['X1'],OFF['X2']),256,256,41472),
 ("rf2_kernel",k_rowfft,(('ws',OFF['X2']),),256,512,8*RS),("col2_kernel",k_col,(),321,256,32768),("ri2_kernel",k_rowinv,(('ws',OFF['X2']),OFF['X3']),256,512,8*RS),
 ("g1b_kernel",k_gemm1,(),256,256,82944),("g2b_kernel",k_gemm2,(OFF['X3'],None),256,256,41472)]
head="".join("; @launch kernel=%s grid=(%d,1,1) block=(%d,1,1) lds=%d\n"%(n,g,b,l) for n,_,_,g,b,l in ks)
txt=[];desc=[]
for n,fn,args,_,_,_ in ks:
    a,b=fn(n,*args); txt.append(a); desc.append(b)
open(sys.argv[1],"w").write(head+'.amdgcn_target "amdgcn-amd-amdhsa--gfx950"\n.text\n'+"".join(txt)+'.section .rodata,"a"\n'+"".join(desc))
```
